```python
import torch

def _softmax(x, axis=-1):
    return torch.softmax(x, dim=axis)
def _gelu(x):
    return torch.nn.functional.gelu(x, approximate="tanh")
def _silu(x):
    return torch.nn.functional.silu(x)
def _sigmoid(x):
    return torch.sigmoid(x)
def _layernorm(x, axis=-1, eps=1e-5):
    m = x.mean(dim=axis, keepdim=True)
    v = x.var(dim=axis, keepdim=True, unbiased=False)
    return (x - m) / torch.sqrt(v + eps)
def _scatter_add(tgt, idx, src, axis=0):
    return tgt.clone().index_add_(axis, idx, src)
def _segment_sum(src, seg, n):
    out = torch.zeros((n,) + src.shape[1:], dtype=src.dtype)
    return out.index_add_(0, seg, src)
def _pad(x, pw):
    flat = tuple(v for pair in reversed(pw) for v in pair)
    return torch.nn.functional.pad(x, flat)

kernel_name = 'sequential_preLN__grouped_kv_mqa__dense_activation_silu__prompt'

def setup_inputs():

    _w = (lambda a: (lambda t: t.to(torch.bfloat16) if t.is_floating_point() else t)(torch.as_tensor(a)))
    def _A_setup():
        B, S, D, H = 1, 2048, 576, 32
        Dh = D // H
        return {
            "x": _w((lambda *s: torch.randn(*s, dtype=torch.bfloat16) * 0.05)(B, S, D)),
            "wq": _w((lambda *s: torch.randn(*s, dtype=torch.bfloat16) * 0.05)(D, H * Dh)),
            "wk": _w((lambda *s: torch.randn(*s, dtype=torch.bfloat16) * 0.05)(D, Dh)),
            "wv": _w((lambda *s: torch.randn(*s, dtype=torch.bfloat16) * 0.05)(D, Dh)),
            "wo": _w((lambda *s: torch.randn(*s, dtype=torch.bfloat16) * 0.05)(H * Dh, D)),
        }
    _A_in = _A_setup()

    def _B_setup():
        B, S, D, F = 1, 2048, 576, 4608
        return {
            "x": _w((lambda *s: torch.randn(*s, dtype=torch.bfloat16) * 0.05)(B, S, D)),
            "w1": _w((lambda *s: torch.randn(*s, dtype=torch.bfloat16) * 1.6)(D, F) * (D ** -0.5)),
            "w2": _w((lambda *s: torch.randn(*s, dtype=torch.bfloat16) * 0.2)(F, D) * (F ** -0.5)),
        }
    _B_in = _B_setup()

    return {
        "A_x": _A_in["x"],
        "A_wq": _A_in["wq"],
        "A_wk": _A_in["wk"],
        "A_wv": _A_in["wv"],
        "A_wo": _A_in["wo"],
        "B_x": _B_in["x"],
        "B_w1": _B_in["w1"],
        "B_w2": _B_in["w2"],
    }

def reference(A_x, A_wq, A_wk, A_wv, A_wo, B_x, B_w1, B_w2):
    def _A_ref(x, wq, wk, wv, wo):
        B, S, D = x.shape
        H = 32
        Dh = D // H
        q = (lambda x, *d: x.permute(*d))((x @ wq).reshape(B, S, H, Dh), 0, 2, 1, 3)
        k = x @ wk
        v = x @ wv
        scores = torch.einsum("bhqd,bkd->bhqk", q, k) * (Dh ** -0.5)
        p = _softmax(scores, axis=-1)
        o = torch.einsum("bhqk,bkd->bhqd", p, v)
        return (lambda x, *d: x.permute(*d))(o, 0, 2, 1, 3).reshape(B, S, H * Dh) @ wo

    def _B_ref(x, w1, w2):
        h = torch.einsum("bsd,df->bsf", x, w1)
        h = _silu(h)
        out = torch.einsum("bsf,fd->bsd", h, w2)
        return out

    x = A_x
    h = x + _A_ref(_layernorm(x, axis=-1), A_wq, A_wk, A_wv, A_wo)
    h2 = h + _B_ref(_layernorm(h, axis=-1), B_w1, B_w2)
    return h2
```

```python
import re

REG_RE = re.compile(r'\b([vas])\[(\d+):(\d+)\]|\b([vas])(\d+)\b|\b(vcc|exec|m0|vcc_lo|vcc_hi|exec_lo|exec_hi|scc)\b')
TRANS = ('v_exp_', 'v_log_', 'v_rcp_', 'v_rsq_', 'v_sqrt_', 'v_sin_', 'v_cos_')

def regs_of(op):
    out = set()
    for m in REG_RE.finditer(op):
        if m.group(1):
            for r in range(int(m.group(2)), int(m.group(3)) + 1):
                out.add(m.group(1) + str(r))
        elif m.group(4):
            out.add(m.group(4) + m.group(5))
        else:
            n = m.group(6)
            if n.startswith('vcc'): out.add('vcc')
            elif n.startswith('exec'): out.add('exec')
            else: out.add(n)
    return out

def split_ops(s):
    ops, depth, cur = [], 0, ''
    for ch in s:
        if ch in '[(': depth += 1
        if ch in '])': depth -= 1
        if ch == ',' and depth == 0:
            ops.append(cur.strip()); cur = ''
        else:
            cur += ch
    if cur.strip(): ops.append(cur.strip())
    return ops

class Ins:
    __slots__ = ('text', 'op', 'kind', 'dst', 'src', 'srcC', 'srcAB', 'passes', 'ws', 'wide', 'data', 'dpp', 'lds', 'opsel')
    def __init__(self, text):
        self.text = text
        t = text.split(';')[0].strip()
        parts = t.split(None, 1)
        self.op = op = parts[0]
        rest = parts[1] if len(parts) > 1 else ''
        ops = split_ops(rest)
        self.dst, self.src, self.srcC, self.srcAB = set(), set(), set(), set()
        self.passes = 0; self.ws = 1; self.wide = False; self.data = set(); self.dpp = False; self.lds = False; self.opsel = False
        if op == 's_nop':
            self.kind = 'nop'; self.ws = int(ops[0], 0) + 1
        elif op.startswith('v_mfma'):
            self.kind = 'mfma'
            self.passes = 8 if '32x32' in op else 4
            self.dst = regs_of(ops[0]); self.srcAB = regs_of(ops[1]) | regs_of(ops[2]); self.srcC = regs_of(ops[3].split()[0])
            self.src = self.srcAB | self.srcC
        elif op.startswith('v_'):
            self.kind = 'valu'
            self.dst = regs_of(ops[0])
            for o in ops[1:]: self.src |= regs_of(o)
            if 'permlane' in op and 'swap' in op:
                self.dst |= regs_of(ops[1]); self.src |= regs_of(ops[0])
            if op.startswith(('v_fmac', 'v_dot2c', 'v_mac', 'v_pk_fmac', 'v_writelane')): self.src |= self.dst
            if op.startswith('v_cmpx'): self.dst.add('exec')
            if op.startswith('v_cndmask') and len(ops) == 3: self.src.add('vcc')
            if '_co_' in op: self.dst |= regs_of(ops[1])
            self.dpp = any(k in rest for k in ('row_', 'quad_perm', 'wave_', '_dpp')) or '_dpp' in op
            self.opsel = 'sdwa' in op or 'op_sel:' in rest
            if self.dpp or 'UNUSED_PRESERVE' in rest: self.src |= self.dst
        elif op.startswith('ds_'):
            self.kind = 'ds'
            if op.startswith(('ds_read', 'ds_bpermute', 'ds_permute', 'ds_swizzle')) or '_rtn' in op:
                self.dst = regs_of(ops[0])
                for o in ops[1:]: self.src |= regs_of(o)
            else:
                for o in ops: self.src |= regs_of(o)
        elif op.startswith(('buffer_', 'global_')):
            self.kind = 'vmem'
            self.lds = bool(re.search(r'\blds\b', rest))
            if 'load' in op and not self.lds:
                self.dst = regs_of(ops[0])
                for o in ops[1:]: self.src |= regs_of(o)
            else:
                for o in ops: self.src |= regs_of(o)
                if 'store' in op:
                    self.data = regs_of(ops[0]); self.wide = op.endswith(('x3', 'x4'))
            if self.lds: self.src.add('m0')
        elif op.startswith('s_'):
            self.kind = 'salu'
            if op.startswith(('s_cmp', 's_cbranch', 's_branch', 's_waitcnt', 's_barrier', 's_endpgm', 's_setprio', 's_sleep', 's_bitcmp')):
                for o in ops: self.src |= regs_of(o)
            else:
                if ops: self.dst = regs_of(ops[0])
                for o in ops[1:]: self.src |= regs_of(o)
                if 'saveexec' in op: self.dst.add('exec')
        else:
            raise ValueError('unknown op ' + text)

def vregs(s): return {r for r in s if r[0] in 'va' and r != 'vcc'}
def sregs(s): return {r for r in s if (r[0] == 's' and r != 'scc') or r == 'vcc'}

def need(p, c):
    n = 0
    if p.kind == 'valu':
        vd = vregs(p.dst); sd = sregs(p.dst)
        isdot = p.op.startswith('v_dot')
        if c.kind == 'mfma' and vd & c.src: n = max(n, 3 if isdot else 2)
        if c.kind == 'mfma' and 'exec' in p.dst: n = max(n, 4)
        if isdot and vd & (c.src | c.dst) and c.kind in ('valu', 'vmem', 'ds', 'mfma'):
            if c.op == p.op:
                ops = split_ops(c.text.split(';')[0].strip().split(None, 1)[1])
                ab = regs_of(ops[1]) | regs_of(ops[2])
                if vd & ab: n = max(n, 3)
            else: n = max(n, 3)
        if c.kind == 'valu':
            if p.op.startswith(TRANS) and not c.op.startswith(TRANS) and vd & c.src: n = max(n, 1)
            if p.op.startswith(TRANS) and c.op.startswith(TRANS) and vd & c.src: n = max(n, 1)
            if p.opsel and vd & (c.src | c.dst): n = max(n, 1)
            if (c.dpp or 'permlane' in c.op) and vd & c.src: n = max(n, 2)
            if c.op.startswith(('v_readlane', 'v_readfirstlane')) and vd & c.src: n = max(n, 1)
            if sd & c.src: n = max(n, 4 if c.op.startswith(('v_readlane', 'v_writelane', 'v_div_fmas')) else 2)
            if 'exec' in p.dst:
                if c.dpp: n = max(n, 5)
                if c.op.startswith(('v_readlane', 'v_readfirstlane', 'v_writelane', 'v_permlane')): n = max(n, 4)
                if 'exec' in c.src: n = max(n, 2)
        if c.kind == 'vmem' and sd & c.src: n = max(n, 5)
        if c.kind == 'salu' and sd & c.src: n = max(n, 1)
    if p.kind == 'mfma':
        big = 12 if p.passes == 8 else 8
        if c.kind == 'mfma':
            if p.dst & c.srcAB: n = max(n, big)
            if p.dst & c.srcC:
                if not (p.dst == c.srcC and p.passes == c.passes): n = max(n, 10 if p.passes == 8 else 6)
            elif p.dst & c.dst: n = max(n, 10 if p.passes == 8 else 6)
        elif c.kind in ('valu', 'vmem', 'ds'):
            if p.dst & (c.src | c.dst): n = max(n, big)
            if p.srcC & c.dst: n = max(n, 7 if p.passes == 8 else 3)
    if p.kind == 'vmem' and p.wide and p.data & c.dst:
        n = max(n, 2 if c.kind in ('valu', 'mfma') else 1)
    if p.kind == 'salu' and 'm0' in p.dst and c.kind == 'vmem' and c.lds: n = max(n, 1)
    return n

def pad_needed(hist, c):
    dist = 0; worst = 0
    for p in reversed(hist):
        if dist >= 20: break
        k = need(p, c) - dist
        if k > worst: worst = k
        dist += p.ws
    return worst

class Asm:
    def __init__(self):
        self.out = []
        self.seq = []
        self.hist = []
        self.branches = []
        self.labels = {}
        self.nops = 0
        self.uid = 0
    def raw(self, text):
        self.out.append(text)
    def comment(self, text):
        self.out.append('    ; ' + text)
    def label(self, name):
        self.out.append(name + ':')
        self.labels[name] = len(self.seq)
    def newlabel(self, base):
        self.uid += 1
        return f'L_{base}_{self.uid}'
    def reset_hist(self):
        self.hist = []
    def __call__(self, text):
        for line in text.strip().split('\n'):
            line = line.strip()
            if not line or line.startswith(';'): continue
            self._one(line)
    def _one(self, text):
        ins = Ins(text)
        k = pad_needed(self.hist, ins)
        while k > 0:
            m = min(k, 16)
            nop = Ins(f's_nop {m-1}')
            self.out.append(f'    s_nop {m-1}')
            self.seq.append(nop); self.hist.append(nop)
            self.nops += 1
            k -= m
        self.out.append('    ' + text)
        self.seq.append(ins); self.hist.append(ins)
        if len(self.hist) > 40: self.hist = self.hist[-40:]
        if ins.op.startswith(('s_cbranch', 's_branch')):
            self.branches.append((list(self.hist), text.split()[1]))
        if ins.op in ('s_branch', 's_endpgm'):
            self.hist = []
    def check_branches(self):
        for hist, lab in self.branches:
            h = list(hist); pos = self.labels[lab]; dist = 0
            while dist < 20 and pos < len(self.seq):
                c = self.seq[pos]
                k = pad_needed(h, c)
                if k > 0:
                    raise RuntimeError(f'hazard across branch to {lab}: {c.text} needs {k} more')
                h.append(c); dist += c.ws; pos += 1
                if c.op in ('s_branch', 's_endpgm'): break
    def text(self):
        self.check_branches()
        return '\n'.join(self.out) + '\n'

def vr(a, n=1, p='v'):
    return f'{p}{a}' if n == 1 else f'{p}[{a}:{a+n-1}]'
def sr(a, n=1):
    return f's{a}' if n == 1 else f's[{a}:{a+n-1}]'
```

```python
import sys, math, struct
from asmlib import Asm, vr, sr

NAME = 'sequential_preLN__grouped_kv_mqa__dense_activation_silu__prompt'
QOFF, KVOFF, OOFF, HOFF, WOF, W1F, W2F, PART = 0x0, 0x300000, 0x400000, 0x700000, 0xA00000, 0x1000000, 0x1600000, 0x2000000
ACT = 2048 * 1152
GRP = 9472
VFR = 608
WOSL = 18 * 4608
OOB = 0x40000000
MF16 = 'v_mfma_f32_16x16x32_bf16'
MF32 = 'v_mfma_f32_32x32x16_bf16'
MF8 = 'v_mfma_f32_32x32x8_bf16'
def f2u(x): return struct.unpack('<I', struct.pack('<f', x))[0]
def hx(x): return f'0x{x & 0xffffffff:08x}'
LOG2E = 1.4426950408889634
STAMP = False

def srd(a, b, n):
    a(f's_mov_b32 s{b+2}, {hx(n)}')
    a(f's_mov_b32 s{b+3}, 0x00020000')

def begin(a, name, nwg):
    a.raw('.p2align 8')
    a.raw(f'.type {name},@function')
    a.raw(f'{name}:')
    a.reset_hist()
    a(f's_cmp_ge_u32 s2, {nwg}')
    a(f's_cbranch_scc1 L_end_{name}')
    if STAMP: a('s_memrealtime s[96:97]')

def end(a, name, kidx, ws):
    if STAMP:
        a('s_waitcnt vmcnt(0) lgkmcnt(0)')
        a('s_memrealtime s[98:99]')
        a('s_getreg_b32 s100, hwreg(HW_REG_XCC_ID)')
        a('s_mov_b64 exec, -1')
        a('v_lshrrev_b32 v2, 6, v0')
        a('v_lshlrev_b32 v2, 4, v2')
        a(f's_lshl_b32 s3, s2, 8')
        a(f's_add_u32 s3, s3, {hx(0x8000000 + kidx * 0x20000)}')
        a('s_waitcnt lgkmcnt(0)')
        a('v_mov_b32 v4, s96'); a('v_mov_b32 v5, s98'); a('v_mov_b32 v6, s100'); a('v_mov_b32 v7, s101')
        a(f'buffer_store_dwordx4 v[4:7], v2, {sr(ws,4)}, s3 offen')
    a.label(f'L_end_{name}')
    a('s_endpgm')

def tbj(a, stb, sj, st):
    a(f's_and_b32 s{st}, s2, 7')
    a(f's_lshl_b32 s{stb}, s{st}, 2')
    a(f's_lshr_b32 s{st}, s2, 6')
    a(f's_add_u32 s{stb}, s{stb}, s{st}')
    a(f's_bfe_u32 s{sj}, s2, 0x30003')

def ln_center(a, X, vones, vmean, vvar, vt, sc_lo, sc_hi, waits, post=None):
    for r in range(4): a(f'v_mov_b32 v{vones+r}, 0x3f803f80')
    for s in range(18):
        waits(s)
        a(f'{MF16} {vr(vmean,4)}, {vr(vones,4)}, {vr(X+4*s,4)}, {"0" if s == 0 else vr(vmean,4)}')
    a(f'v_mul_f32 v{vmean}, {hx(f2u(-1.0/576))}, v{vmean}')
    def d(r):
        t = vt + 2 * (r % 3)
        a(f'v_dot2_f32_bf16 v{t}, v{X+r}, s{sc_lo}, v{vmean}')
        a(f'v_dot2_f32_bf16 v{t+1}, v{X+r}, s{sc_hi}, v{vmean}')
    def c(r):
        t = vt + 2 * (r % 3)
        a(f'v_cvt_pk_bf16_f32 v{X+r}, v{t}, v{t+1}')
    d(0); d(1)
    for r in range(72):
        if r + 2 < 72: d(r + 2)
        c(r)
        if r % 4 == 0 and r >= 4:
            s = r // 4 - 1
            a(f'{MF16} {vr(vvar,4)}, {vr(X+4*s,4)}, {vr(X+4*s,4)}, {"0" if s == 0 else vr(vvar,4)}')
            if post: post(s)
    a(f'{MF16} {vr(vvar,4)}, {vr(X+68,4)}, {vr(X+68,4)}, {vr(vvar,4)}')
    if post: post(17)

def ln_rstd(a, vvar, vlane, vt, sm):
    a(f's_mov_b32 s{sm}, 0xaaaaaaaa'); a(f's_mov_b32 s{sm+1}, 0xaaaaaaaa')
    a(f's_mov_b32 s{sm+2}, 0xcccccccc'); a(f's_mov_b32 s{sm+3}, 0xcccccccc')
    a(f'v_and_b32 v{vt}, 15, v{vlane}')
    a(f'v_lshrrev_b32 v{vt+1}, 2, v{vt}')
    a(f'v_lshl_add_u32 v{vt}, v{vt+1}, 4, v{vt}')
    a(f'v_lshlrev_b32 v{vt}, 2, v{vt}')
    a(f'v_cndmask_b32 v{vvar}, v{vvar}, v{vvar+1}, {sr(sm,2)}')
    a(f'v_cndmask_b32 v{vvar+2}, v{vvar+2}, v{vvar+3}, {sr(sm,2)}')
    a(f'v_cndmask_b32 v{vvar}, v{vvar}, v{vvar+2}, {sr(sm+2,2)}')
    a(f'ds_bpermute_b32 v{vvar}, v{vt}, v{vvar}')
    a(f'v_mov_b32 v{vt+1}, {hx(f2u(1e-5))}')
    a('s_waitcnt lgkmcnt(0)')
    a(f'v_fmac_f32 v{vt+1}, {hx(f2u(1.0/576))}, v{vvar}')
    a(f'v_rsq_f32 v{vvar}, v{vt+1}')

def k1(a):
    name = 'k1_kernel'
    begin(a, name, 256)
    SX, SWQ, SKV, SWS = 4, 8, 12, 16
    a('s_load_dwordx2 s[4:5], s[0:1], 0')
    a('s_load_dwordx2 s[8:9], s[0:1], 8')
    a('s_load_dwordx4 s[24:27], s[0:1], 16')
    a('s_load_dwordx2 s[16:17], s[0:1], 80')
    srd(a, SX, ACT); srd(a, SWQ, 576 * 1152); srd(a, SKV, 576 * 36); srd(a, SWS, 0x10000000)
    sTB, sJ, sW, sTT, sT0, sT1, sXO = 30, 31, 32, 33, 34, 35, 36
    sM = 40
    sLO, sHI = 46, 47
    tbj(a, sTB, sJ, sT0)
    vL, vG, vT = 1, 2, 3
    a(f'v_lshrrev_b32 v4, 6, v0')
    a(f'v_and_b32 v{vL}, 63, v0')
    a(f'v_readfirstlane_b32 s{sW}, v4')
    a(f'v_lshrrev_b32 v{vG}, 4, v{vL}')
    a(f'v_and_b32 v{vT}, 15, v{vL}')
    vXO = 20
    a(f'v_mul_u32_u24 v{vXO}, 1152, v{vT}')
    a(f'v_lshl_add_u32 v21, v{vG}, 3, v{vXO}')
    a(f'v_lshl_add_u32 v{vXO}, v{vG}, 4, v{vXO}')
    a(f's_lshl_b32 s{sTT}, s{sTB}, 2')
    a(f's_add_u32 s{sTT}, s{sTT}, s{sW}')
    a(f's_mul_i32 s{sXO}, s{sTT}, {16*1152}')
    X = 32
    a('s_waitcnt lgkmcnt(0)')
    for s in range(18):
        a(f'buffer_load_dwordx4 {vr(X+4*s,4)}, v{vXO}, {sr(SX,4)}, s{sXO} offen offset:{64*s}')
    for m in range(5):
        a(f'v_add_u32 v4, {256*m}, v0')
        a(f'v_mul_u32_u24 v5, 6554, v4')
        a(f'v_lshrrev_b32 v5, 16, v5')
        a(f'v_mul_u32_u24 v6, 10, v5')
        a(f'v_sub_u32 v6, v4, v6')
        a(f'v_lshrrev_b32 v7, 1, v5')
        a(f'v_and_b32 v7, 4, v7')
        a(f'v_xor_b32 v5, v5, v7')
        a(f'v_mul_u32_u24 v5, 1152, v5')
        a(f'v_lshl_add_u32 v5, v6, 4, v5')
        a(f'v_cmp_eq_u32 vcc, 9, v6')
        a(f'v_mov_b32 v7, {hx(OOB)}')
        a(f's_add_u32 s{sT0}, s{sW}, {4*m}')
        a(f's_mul_i32 s{sT1}, s{sT0}, 13')
        a(f'v_cndmask_b32 v{10+m}, v5, v7, vcc')
        a(f's_lshr_b32 s{sT1}, s{sT1}, 6')
        a(f's_add_u32 s{sT0}, s{sT0}, s{sT1}')
        a(f's_lshl_b32 s{sM+m}, s{sT0}, 10')
    a(f's_cmp_lt_u32 s{sJ}, 3')
    a(f's_cselect_b32 s12, s24, s26')
    a(f's_cselect_b32 s13, s25, s27')
    a(f's_cselect_b32 s{sT0}, 0, 3')
    a(f's_sub_u32 s{sT0}, s{sJ}, s{sT0}')
    a(f's_lshl_b32 s{sT1}, s{sT0}, 4')
    a(f's_min_u32 s{sT1}, s{sT1}, 20')
    a(f's_mul_i32 s{sT0}, s{sW}, {32*36}')
    sKO = 37
    a(f's_add_u32 s{sKO}, s{sT0}, s{sT1}')
    a(f'v_mul_u32_u24 v15, 36, v{vL}')
    a(f'v_cmp_gt_u32 vcc, 32, v{vL}')
    sWO, sKM = 38, 39
    a(f's_mul_i32 s{sWO}, s{sJ}, 144')
    a(f's_mul_i32 s{sKM}, s{sW}, 6144')
    a(f'v_cndmask_b32 v15, v7, v15, vcc')
    ndma = 0
    for sb in range(5):
        for m in range(5 if sb < 4 else 3):
            a(f's_add_u32 m0, s{sM+m}, {sb*24576}')
            a(f'buffer_load_dwordx4 v{10+m}, {sr(SWQ,4)}, s{sWO} offen lds')
            ndma += 1
        a(f's_add_u32 m0, s{sKM}, {sb*24576+5120}')
        a(f's_add_u32 s{sWO}, s{sWO}, {128*1152}')
        a(f'buffer_load_dwordx4 v15, {sr(SKV,4)}, s{sKO} offen lds')
        a(f's_add_u32 s{sKO}, s{sKO}, {128*36}')
        ndma += 1
    A0, A1, A40, A41 = 16, 17, 18, 19
    a(f'v_bfe_u32 v4, v{vL}, 2, 2')
    a(f'v_lshl_add_u32 v4, v{vG}, 3, v4')
    a(f'v_and_b32 v5, 1, v{vG}')
    a(f'v_lshlrev_b32 v5, 2, v5')
    a(f'v_xor_b32 v6, v4, v5')
    a(f'v_xor_b32 v7, 4, v6')
    a(f'v_and_b32 v5, 3, v{vL}')
    a(f'v_lshlrev_b32 v5, 3, v5')
    a(f'v_mad_u32_u24 v{A0}, v6, 160, v5') if False else None
    a(f'v_mul_u32_u24 v{A0}, 160, v6'); a(f'v_add_u32 v{A0}, v{A0}, v5')
    a(f'v_mul_u32_u24 v{A1}, 160, v7'); a(f'v_add_u32 v{A1}, v{A1}, v5')
    a(f'v_lshl_add_u32 v4, v4, 4, v5')
    a(f'v_add_u32 v4, {5120-16-128}, v4')
    a(f'v_add_u32 v6, 64, v4')
    a(f'v_cmp_gt_u32 vcc, 16, v5')
    a(f's_mov_b32 s{sLO}, 0x00003f80'); a(f's_mov_b32 s{sHI}, 0x3f800000')
    a(f'v_cndmask_b32 v{A40}, v4, v{A0}, vcc')
    a(f'v_cndmask_b32 v{A41}, v6, v{A1}, vcc')
    WR, ACC, MEAN, VAR, ONES, TMP = 104, 132, 152, 156, 160, 22
    ln_center(a, X, ONES, MEAN, VAR, TMP, sLO, sHI, lambda s: a(f's_waitcnt vmcnt({ndma + 17 - s})'))
    a('s_waitcnt vmcnt(0)')
    a('s_barrier')
    D = 7
    def rd(f):
        s, ct = divmod(f, 5)
        if f == 45:
            for r in (A0, A1, A40, A41): a(f'v_add_u32 v{r}, {9*6144}, v{r}')
        off = (s % 9) * 6144 + ct * 32
        r = WR + 4 * (f % D)
        a(f'ds_read_b64_tr_b16 {vr(r,2)}, v{A0 if ct < 4 else A40} offset:{off}')
        a(f'ds_read_b64_tr_b16 {vr(r+2,2)}, v{A1 if ct < 4 else A41} offset:{off}')
    for f in range(D): rd(f)
    for f in range(90):
        s, ct = divmod(f, 5)
        a(f's_waitcnt lgkmcnt({2 * min(D - 1, 89 - f)})')
        a(f'{MF16} {vr(ACC+4*ct,4)}, {vr(WR+4*(f%D),4)}, {vr(X+4*s,4)}, {"0" if s == 0 else vr(ACC+4*ct,4)}')
        if f + D < 90: rd(f + D)
    ln_rstd(a, VAR, vL, TMP, 48)
    QS = LOG2E / math.sqrt(18.0)
    a(f'v_cmp_gt_u32 vcc, 32, v{vL}')
    a(f'v_mul_f32 v{VAR+1}, {hx(f2u(QS))}, v{VAR}')
    a(f's_mul_i32 s{sT0}, s{sJ}, 144')
    a(f's_add_u32 s{sXO}, s{sXO}, s{sT0}')
    if QOFF: a(f's_add_u32 s{sXO}, s{sXO}, {hx(QOFF)}')
    a(f'v_cndmask_b32 v{VAR+2}, v{VAR}, v{VAR+1}, vcc')
    for ct in range(5):
        for r in range(4):
            a(f'v_mul_f32 v{ACC+4*ct+r}, v{ACC+4*ct+r}, v{VAR+1 if ct < 4 else VAR+2}')
        a(f'v_cvt_pk_bf16_f32 v{ACC+4*ct}, v{ACC+4*ct}, v{ACC+4*ct+1}')
        a(f'v_cvt_pk_bf16_f32 v{ACC+4*ct+1}, v{ACC+4*ct+2}, v{ACC+4*ct+3}')
        if ct == 4: a('s_mov_b32 exec_hi, 0')
        a(f'buffer_store_dwordx2 {vr(ACC+4*ct,2)}, v21, {sr(SWS,4)}, s{sXO} offen offset:{32*ct}')
    P0, P1 = ACC + 16, ACC + 17
    sGB = 38
    a('s_mov_b64 exec, -1')
    a(f's_lshr_b32 s{sT0}, s{sTT}, 3')
    a(f's_mul_i32 s{sGB}, s{sT0}, {GRP}')
    a(f's_add_u32 s{sGB}, s{sGB}, {hx(KVOFF)}')
    a(f's_cmp_gt_u32 s{sJ}, 2')
    a(f's_cbranch_scc1 L_k1_v')
    a(f's_and_b32 s{sT0}, s{sTT}, 1')
    a(f's_lshl_b32 s{sT0}, s{sT0}, 8')
    a(f's_add_u32 s{sGB}, s{sGB}, s{sT0}')
    a(f's_bfe_u32 s{sT1}, s{sTT}, 0x20001')
    a(f'v_lshlrev_b32 v4, 4, v{vT}')
    a(f's_cmp_eq_u32 s{sJ}, 2')
    a(f's_cbranch_scc1 L_k1_k2')
    a(f's_lshl_b32 s{sT1}, s{sT1}, 10')
    a(f's_lshl_b32 s{sT0}, s{sJ}, 9')
    a(f's_add_u32 s{sGB}, s{sGB}, s{sT1}')
    a(f's_add_u32 s{sGB}, s{sGB}, s{sT0}')
    a(f'v_and_b32 v5, 1, v{vG}')
    a(f'v_lshl_add_u32 v4, v5, 3, v4')
    a('s_mov_b32 exec_lo, 0')
    a(f'buffer_store_dwordx2 {vr(P0,2)}, v4, {sr(SWS,4)}, s{sGB} offen')
    a(f's_branch L_k1_done')
    a.label('L_k1_k2')
    a(f's_lshl_b32 s{sT1}, s{sT1}, 2')
    a(f's_add_u32 s{sGB}, s{sGB}, s{sT1}')
    a(f's_add_u32 s{sGB}, s{sGB}, 4096')
    a('s_mov_b32 exec_lo, 0')
    a('s_mov_b32 exec_hi, 0xffff0000')
    a(f'buffer_store_dword v{P1}, v4, {sr(SWS,4)}, s{sGB} offen')
    a(f's_branch L_k1_done')
    a.label('L_k1_v')
    a(f's_and_b32 s{sT0}, s{sTT}, 7')
    a(f's_mul_i32 s{sT0}, s{sT0}, {VFR}')
    a(f's_add_u32 s{sGB}, s{sGB}, s{sT0}')
    a(f's_add_u32 s{sGB}, s{sGB}, 4608')
    a(f's_cmp_gt_u32 s{sJ}, 5')
    a(f's_cbranch_scc1 L_k1_c')
    a(f'v_bfe_u32 v4, v{vT}, 2, 1')
    a(f'v_mul_u32_u24 v4, 288, v4')
    a(f'v_and_b32 v5, 1, v{vG}')
    a(f'v_lshl_add_u32 v4, v5, 7, v4')
    a(f'v_and_b32 v5, 8, v{vT}')
    a(f'v_add_u32 v4, v4, v5')
    a(f'v_and_b32 v5, 3, v{vT}')
    a(f'v_lshl_add_u32 v4, v5, 1, v4')
    a('s_mov_b32 exec_lo, 0')
    a(f's_cmp_eq_u32 s{sJ}, 5')
    a(f's_cbranch_scc1 L_k1_v2')
    a(f's_sub_u32 s{sT0}, s{sJ}, 3')
    a(f's_lshl_b32 s{sT0}, s{sT0}, 6')
    a(f's_add_u32 s{sGB}, s{sGB}, s{sT0}')
    a(f'buffer_store_short v{P0}, v4, {sr(SWS,4)}, s{sGB} offen')
    a(f'buffer_store_short_d16_hi v{P0}, v4, {sr(SWS,4)}, s{sGB} offen offset:16')
    a(f'buffer_store_short v{P1}, v4, {sr(SWS,4)}, s{sGB} offen offset:32')
    a(f'buffer_store_short_d16_hi v{P1}, v4, {sr(SWS,4)}, s{sGB} offen offset:48')
    a(f's_branch L_k1_done')
    a.label('L_k1_v2')
    a('s_mov_b32 exec_hi, 0xffff0000')
    a(f'buffer_store_short v{P1}, v4, {sr(SWS,4)}, s{sGB} offen offset:128')
    a(f'buffer_store_short_d16_hi v{P1}, v4, {sr(SWS,4)}, s{sGB} offen offset:144')
    a(f's_branch L_k1_done')
    a.label('L_k1_c')
    a(f's_cmp_eq_u32 s{sJ}, 7')
    a(f's_cbranch_scc1 L_k1_done')
    a(f'v_cmp_gt_u32 vcc, 4, v{vL}')
    a(f'v_lshlrev_b32 v4, 2, v{vL}')
    a(f'v_mov_b32 v5, 0')
    a(f'v_cndmask_b32 v5, v5, v{ONES}, vcc')
    a('s_mov_b64 exec, 0xff')
    a(f'buffer_store_dword v5, v4, {sr(SWS,4)}, s{sGB} offen offset:576')
    a.label('L_k1_done')
    end(a, name, 0, SWS)
    return dict(name=name, grid=256, block=256, lds=122880, vgpr=168, acc=168)

def k2(a):
    name = 'k2_kernel'
    begin(a, name, 256)
    SWS, SSRC = 4, 8
    a('s_load_dwordx2 s[4:5], s[0:1], 80')
    a('s_load_dwordx2 s[24:25], s[0:1], 32')
    a('s_load_dwordx4 s[20:23], s[0:1], 48')
    srd(a, SWS, 0x10000000)
    sTB, sJ, sW, sTT, sS, sT0, sT1, sG, sEV, sFIN = 30, 31, 32, 33, 34, 35, 36, 37, 38, 39
    tbj(a, sTB, sJ, sT0)
    vL = 1
    a(f'v_lshrrev_b32 v4, 6, v0')
    a(f'v_and_b32 v{vL}, 63, v0')
    a(f'v_readfirstlane_b32 s{sW}, v4')
    vAK, vA2, vAV = 2, 3, 12
    a(f'v_lshlrev_b32 v{vAK}, 4, v{vL}')
    a(f's_lshl_b32 s{sT0}, s{sW}, 10')
    a(f's_add_u32 s{sT1}, s{sT0}, {hx(KVOFF)}')
    a(f's_mov_b32 m0, s{sT0}')
    a('s_waitcnt lgkmcnt(0)')
    def dma(n):
        a(f'buffer_load_dwordx4 v{vAK}, {sr(SWS,4)}, s{sT1} offen lds')
        if n < 18:
            a(f's_add_u32 m0, m0, 8192')
            a(f's_add_u32 s{sT1}, s{sT1}, 8192')
    dma(0); dma(1)
    S0, S1, O, P, K16, K2, V0, V1, Q, QA, QB = 16, 32, 48, 64, 72, 76, 80, 84, 88, 92, 94
    vT, vHH, vHL = 5, 6, 7
    a(f'v_and_b32 v{vT}, 15, v{vL}')
    a(f'v_bfe_u32 v{vHH}, v{vL}, 4, 1')
    a(f'v_lshrrev_b32 v{vHL}, 5, v{vL}')
    a(f'v_mul_u32_u24 v8, 1152, v{vT}')
    a(f'v_mul_u32_u24 v9, 36, v{vHH}')
    a(f'v_add_u32 v8, v8, v9')
    a(f'v_lshl_add_u32 v8, v{vHL}, 4, v8')
    a(f's_and_b32 s{sTT}, s{sW}, 3')
    a(f's_lshl_b32 s{sTB}, s{sTB}, 2')
    a(f's_add_u32 s{sTT}, s{sTT}, s{sTB}')
    a(f's_lshr_b32 s{sS}, s{sW}, 2')
    a(f's_lshl_b32 s{sT0}, s{sJ}, 1')
    a(f's_add_u32 s{sS}, s{sS}, s{sT0}')
    a(f's_mul_i32 s{sTT}, s{sTT}, 18432')
    a(f's_mul_i32 s{sT0}, s{sS}, 72')
    a(f's_add_u32 s{sT0}, s{sT0}, s{sTT}')
    if QOFF: a(f's_add_u32 s{sT0}, s{sT0}, {hx(QOFF)}')
    vQ2 = 13
    a(f'buffer_load_dwordx4 {vr(Q,4)}, v8, {sr(SWS,4)}, s{sT0} offen')
    a(f'buffer_load_dword v{vQ2}, v8, {sr(SWS,4)}, s{sT0} offen offset:32')
    for n in range(2, 19): dma(n)
    a(f'v_cmp_gt_u32 vcc, 32, v{vL}')
    a(f'v_add_u32 v8, 4096, v{vAK}')
    a(f'v_mov_b32 v9, {4608+576}')
    a(f'v_cndmask_b32 v{vA2}, v9, v8, vcc')
    a(f'v_and_b32 v8, 31, v{vL}')
    a(f'v_mul_u32_u24 v9, 18, v{vHL}')
    a(f'v_add_u32 v9, v9, v8')
    a(f'v_cmp_lt_u32 vcc, 17, v8')
    a(f'v_mov_b32 v10, 37')
    a(f'v_and_b32 v8, 27, v8')
    a(f'v_cndmask_b32 v9, v9, v10, vcc')
    a(f'v_cmp_eq_u32 vcc, 18, v8')
    a(f'v_mov_b32 v10, 36')
    a(f's_mov_b32 s{sEV}, 1')
    a(f's_mov_b32 s{sFIN}, 0')
    a(f'v_mov_b32 v137, {hx(OOB)}'); a(f'v_mov_b32 v138, {hx(OOB)}'); a('s_mov_b32 s47, 0')
    a(f'v_cndmask_b32 v9, v9, v10, vcc')
    a(f'v_lshlrev_b32 v{vAV}, 4, v9')
    a(f'v_cmp_gt_u32 vcc, 32, v{vL}')
    a(f's_waitcnt vmcnt(17)')
    a(f'v_cndmask_b32 v{vQ2}, 0, v{vQ2}, vcc')
    a(f'v_mov_b32 v{QA+1}, 0')
    a(f'v_mov_b32 v{QA}, v{vQ2}')
    a('s_barrier')
    a(f'ds_read_b128 {vr(K16,4)}, v{vAK}')
    a(f'ds_read_b128 {vr(K2,4)}, v{vA2}')
    a(f's_waitcnt lgkmcnt(0)')
    a(f'{MF32} {vr(S0,16)}, {vr(K16,4)}, {vr(Q,4)}, 0')
    a(f'{MF8} {vr(S0,16)}, {vr(K2,2)}, {vr(QA,2)}, {vr(S0,16)}')
    vM = 14
    a(f'v_max3_f32 v{vM}, v{S0}, v{S0+1}, v{S0+2}')
    for r in range(3, 15, 2): a(f'v_max3_f32 v{vM}, v{vM}, v{S0+r}, v{S0+r+1}')
    a(f'v_max_f32 v{vM}, v{vM}, v{S0+15}')
    a.label('L_k2_setm')
    a(f'v_mov_b32 v8, v{vM}')
    a(f'v_permlane32_swap_b32 v8, v{vM}')
    a(f'v_max_f32 v8, v8, v{vM}')
    a(f'v_mul_f32 v8, -1.0, v8')
    a(f'v_and_b32 v9, 0xffff0000, v8')
    a(f'v_sub_f32 v8, v8, v9')
    a(f'v_and_b32 v10, 0xffff0000, v8')
    a(f'v_sub_f32 v8, v8, v10')
    a(f'v_lshrrev_b32 v9, 16, v9')
    a(f'v_or_b32 v9, v9, v10')
    a(f'v_lshrrev_b32 v8, 16, v8')
    a(f'v_cmp_gt_u32 vcc, 32, v{vL}')
    a(f'ds_read_b128 {vr(V0,4)}, v{vAV} offset:4608')
    for r in range(16): a(f'v_mov_b32 v{O+r}, 0')
    a(f'v_cndmask_b32 v{QA}, v9, v{vQ2}, vcc')
    a(f'v_cndmask_b32 v{QA+1}, v8, v{O}, vcc')
    a(f'v_cndmask_b32 v{QB}, v9, v{O}, vcc')
    a(f'v_cndmask_b32 v{QB+1}, v8, v{vQ2}, vcc')
    for r in (S1+14, S1+15, P+4, P+5, P+6, V1, V1+1, V1+2, V1+3): a(f'v_mov_b32 v{r}, 0')
    a(f'{MF32} {vr(S0,16)}, {vr(K16,4)}, {vr(Q,4)}, 0')
    a(f'{MF8} {vr(S0,16)}, {vr(K2,2)}, {vr(QA,2)}, {vr(S0,16)}')
    a(f'ds_read_b128 {vr(K16,4)}, v{vAK} offset:1024')
    a(f's_mov_b32 s{sG}, 0')
    a(f's_waitcnt lgkmcnt(0)')
    a('s_nop 8')
    a.raw('.p2align 6')
    a.label('L_k2_loop')
    for T in range(4):
        S, Sn = (S0, S1) if T % 2 == 0 else (S1, S0)
        e = lambda r: f'v_exp_f32 v{S+r}, v{S+r}'
        c = lambda k: f'v_cvt_pk_bf16_f32 v{P+k}, v{S+2*k}, v{S+2*k+1}'
        st = [e(0), f'v_cvt_pk_bf16_f32 v{P+7}, v{Sn+14}, v{Sn+15}']
        for k in range(7): st += [e(2*k+1), e(2*k+2), c(k)]
        st.append(e(15))
        Tn = (T + 1) % 4
        for idx, op in enumerate(st):
            a(op)
            if idx == 1:
                a(f's_waitcnt lgkmcnt({3 if T == 3 else 2})')
                a(f'{MF32} {vr(Sn,16)}, {vr(K16,4)}, {vr(Q,4)}, 0')
                a(f'ds_read_b128 {vr(K16,4)}, v{vAK} offset:{(T+2)*1024 if T < 2 else GRP+(T-2)*1024}')
            if idx == 6:
                a(f's_waitcnt lgkmcnt({3 if T == 3 else 2})')
                a(f'{MF32} {vr(O,16)}, {vr(V1,4)}, {vr(P+4,4)}, {vr(O,16)}')
                a(f'ds_read_b128 {vr(V1,4)}, v{vAV} offset:{4608+(2*T+1)*VFR}')
            if idx == 11:
                if T == 3: a(f's_waitcnt lgkmcnt(3)')
                a(f'{MF8} {vr(Sn,16)}, {vr(K2+2*(Tn//2),2)}, {vr(QA if Tn % 2 == 0 else QB,2)}, {vr(Sn,16)}')
                if T == 2: a(f'ds_read_b128 {vr(K2,4)}, v{vA2} offset:{GRP}')
            if idx == 17:
                a(f's_waitcnt lgkmcnt({3 if T == 2 else 2})')
                a(f'{MF32} {vr(O,16)}, {vr(V0,4)}, {vr(P,4)}, {vr(O,16)}')
                a(f'ds_read_b128 {vr(V0,4)}, v{vAV} offset:{4608+(2*T+2)*VFR if T < 3 else GRP+4608}')
                if T == 3:
                    a(f's_add_u32 s{sG}, s{sG}, 1')
                    a(f'v_add_u32 v{vAK}, {GRP}, v{vAK}')
                    a(f'v_add_u32 v{vA2}, {GRP}, v{vA2}')
                    a(f'v_add_u32 v{vAV}, {GRP}, v{vAV}')
                    a(f's_cmp_lg_u32 s{sG}, s{sEV}')
    a(f's_cbranch_scc1 L_k2_loop')
    a(f's_cmp_eq_u32 s{sG}, 16')
    a(f's_cbranch_scc1 L_k2_fin')
    a(f's_cmp_eq_u32 s{sG}, 1')
    a(f's_cbranch_scc0 L_k2_ev3')
    a(f's_waitcnt vmcnt(13)')
    a('s_barrier')
    a(f's_mov_b32 s{sEV}, 3')
    a('s_branch L_k2_loop')
    a.label('L_k2_ev3')
    a(f's_cmp_eq_u32 s{sG}, 3')
    a(f's_cbranch_scc0 L_k2_ev8')
    a(f's_waitcnt vmcnt(0)')
    a('s_barrier')
    sV, sX8, sA, sB, sSO, sIA, sIB, sDO = 40, 41, 42, 43, 44, 45, 46, 47
    R, TR, vSO, vD0, vD1 = 96, 128, 136, 137, 138
    t0, t1, t2, t3 = 140, 141, 142, 143
    a(f's_mov_b32 s{sEV}, 16')
    a(f's_lshl_b32 s{sV}, s{sW}, 5')
    a(f's_lshr_b32 s{sT0}, s2, 3')
    a(f's_add_u32 s{sV}, s{sV}, s{sT0}')
    a(f's_and_b32 s{sX8}, s2, 7')
    a(f's_mov_b32 s11, 0x00020000')
    a(f'v_and_b32 v{t0}, 7, v{vL}')
    a(f'v_bfe_u32 v{t1}, v{vL}, 3, 1')
    a(f'v_lshrrev_b32 v{t2}, 4, v{vL}')
    a(f's_cmp_ge_u32 s{sV}, 162')
    a(f's_cbranch_scc1 L_k2_wo')
    a(f's_cmp_ge_u32 s{sV}, 81')
    a(f's_cselect_b32 s8, s22, s20')
    a(f's_cselect_b32 s9, s23, s21')
    a(f's_mov_b32 s10, {576*4608*2}')
    a(f's_cselect_b32 s{sT0}, 81, 0')
    a(f's_cselect_b32 s{sIA}, 1152, 9216') if False else None
    a(f's_movk_i32 s{sIB}, 0x2400')
    a(f's_cselect_b32 s{sIA}, 1152, s{sIB}')
    a(f's_mov_b32 s{sIB}, {hx(W1F)}')
    a(f's_cselect_b32 s{sDO}, {hx(W2F)}, s{sIB}')
    a(f's_movk_i32 s{sIB}, 1152')
    a(f's_cselect_b32 s{sT1}, {576*1152}, s{sIB}')
    a(f's_sub_u32 s{sV}, s{sV}, s{sT0}')
    a(f's_mul_i32 s{sA}, s{sV}, 57')
    a(f's_lshr_b32 s{sA}, s{sA}, 9')
    a(f's_mul_i32 s{sT0}, s{sA}, 9')
    a(f's_sub_u32 s{sB}, s{sV}, s{sT0}')
    a(f's_mul_i32 s{sSO}, s{sX8}, s{sT1}')
    a(f's_lshl_b32 s{sT0}, s{sA}, 7')
    a(f's_add_u32 s{sSO}, s{sSO}, s{sT0}')
    a(f's_mul_i32 s{sT0}, s{sB}, s{sIA}')
    a(f's_lshl_b32 s{sT0}, s{sT0}, 6')
    a(f's_add_u32 s{sSO}, s{sSO}, s{sT0}')
    a(f's_mov_b32 s{sIB}, s{sIA}')
    a(f's_mul_i32 s{sT0}, s{sX8}, 9')
    a(f's_add_u32 s{sT0}, s{sT0}, s{sA}')
    a(f's_mul_i32 s{sT0}, s{sT0}, 36')
    a(f's_add_u32 s{sT0}, s{sT0}, s{sB}')
    a(f's_lshl_b32 s{sT0}, s{sT0}, 11')
    a(f's_add_u32 s{sDO}, s{sDO}, s{sT0}')
    a(f'v_lshl_add_u32 v{t3}, v{t1}, 2, v{t2}')
    a(f'v_lshlrev_b32 v{t3}, 3, v{t3}')
    a(f'v_mul_u32_u24 v{vSO}, s{sIA}, v{t3}')
    a(f'v_lshl_add_u32 v{vSO}, v{t0}, 4, v{vSO}')
    a(f'v_lshrrev_b32 v{t3}, 2, v{t0}')
    a(f'v_mul_u32_u24 v{t3}, 36, v{t3}')
    a(f'v_add_u32 v{t3}, v{t3}, v{t1}')
    a(f'v_lshlrev_b32 v{vD0}, 10, v{t3}')
    a(f'v_lshl_add_u32 v{vD0}, v{t2}, 8, v{vD0}')
    a(f'v_and_b32 v{t3}, 3, v{t0}')
    a(f'v_lshl_add_u32 v{vD0}, v{t3}, 6, v{vD0}')
    a(f'v_add_u32 v{vD1}, 18432, v{vD0}')
    a(f's_branch L_k2_sload')
    a.label('L_k2_wo')
    a(f's_sub_u32 s{sV}, s{sV}, 162')
    a(f's_lshl_b32 s{sV}, s{sV}, 3')
    a(f's_add_u32 s{sV}, s{sV}, s{sX8}')
    a(f's_cmp_ge_u32 s{sV}, 81')
    a(f's_cbranch_scc1 L_k2_loop')
    a(f's_mov_b32 s8, s24')
    a(f's_mov_b32 s9, s25')
    a(f's_mov_b32 s10, {576*1152}')
    a(f's_mul_i32 s{sA}, s{sV}, 57')
    a(f's_lshr_b32 s{sA}, s{sA}, 9')
    a(f's_mul_i32 s{sT0}, s{sA}, 9')
    a(f's_sub_u32 s{sB}, s{sV}, s{sT0}')
    a(f's_movk_i32 s{sIA}, 1152')
    a(f's_mul_i32 s{sSO}, s{sA}, {72*1152}')
    a(f's_cmp_eq_u32 s{sA}, 8')
    a(f's_cselect_b32 s{sIB}, {17*1152}, s{sIA}')
    a(f's_cselect_b32 s{sSO}, {16*1152}, s{sSO}')
    a(f's_cselect_b32 s48, 288, 36') if False else None
    a(f's_movk_i32 s48, 288')
    a(f's_cselect_b32 s48, s48, 36')
    a(f's_movk_i32 s49, 144')
    a(f's_cselect_b32 s49, s49, 18')
    a(f's_movk_i32 s50, 72')
    a(f's_cselect_b32 s50, s50, 8')
    a(f's_lshl_b32 s{sT0}, s{sB}, 7')
    a(f's_add_u32 s{sSO}, s{sSO}, s{sT0}')
    a(f'v_mul_u32_u24 v{vSO}, s48, v{t1}')
    a(f'v_lshrrev_b32 v{t3}, 1, v{t2}')
    a(f'v_mul_u32_u24 v{t3}, s49, v{t3}')
    a(f'v_add_u32 v{vSO}, v{vSO}, v{t3}')
    a(f'v_and_b32 v{t3}, 1, v{t2}')
    a(f'v_mul_u32_u24 v{t3}, s50, v{t3}')
    a(f'v_add_u32 v{vSO}, v{vSO}, v{t3}')
    a(f'v_mul_u32_u24 v{vSO}, 1152, v{vSO}')
    a(f'v_lshl_add_u32 v{vSO}, v{t0}, 4, v{vSO}')
    a(f's_mul_i32 s{sDO}, s{sA}, {2*4608}')
    a(f's_add_u32 s{sDO}, s{sDO}, {hx(WOF)}')
    a(f's_lshl_b32 s{sT0}, s{sB}, 3')
    a(f'v_add_u32 v{t0}, s{sT0}, v{t0}')
    a(f'v_mul_u32_u24 v{t3}, 57, v{t0}')
    a(f'v_lshrrev_b32 v{t3}, 9, v{t3}')
    a(f'v_mul_u32_u24 v{vD1}, 9, v{t3}')
    a(f'v_sub_u32 v{t0}, v{t0}, v{vD1}')
    a(f'v_mul_u32_u24 v{t3}, {WOSL}, v{t3}')
    a(f'v_mul_u32_u24 v{t1}, 4608, v{t1}')
    a(f'v_add_u32 v{t3}, v{t3}, v{t1}')
    a(f'v_lshrrev_b32 v{t1}, 2, v{t0}')
    a(f'v_lshl_add_u32 v{t3}, v{t1}, 11, v{t3}')
    a(f'v_and_b32 v{t1}, 3, v{t0}')
    a(f'v_lshl_add_u32 v{t3}, v{t1}, 6, v{t3}')
    a(f'v_cmp_eq_u32 vcc, 8, v{t0}')
    a(f'v_lshl_add_u32 v{vD0}, v{t2}, 8, v{t3}')
    a(f'v_lshl_add_u32 v{t1}, v{t2}, 7, v{t3}')
    a(f'v_mov_b32 v{t0}, 1024')
    a(f'v_cndmask_b32 v{vD0}, v{vD0}, v{t1}, vcc')
    a(f'v_cndmask_b32 v{t0}, v{t0}, 64, vcc') if False else None
    a(f'v_mov_b32 v{t2}, 64')
    a(f'v_cndmask_b32 v{t0}, v{t0}, v{t2}, vcc')
    a(f'v_add_u32 v{vD1}, v{vD0}, v{t0}')
    a.label('L_k2_sload')
    for e in range(8):
        a(f'buffer_load_dwordx4 {vr(R+4*e,4)}, v{vSO}, {sr(SSRC,4)}, s{sSO} offen')
        if e < 7: a(f's_add_u32 s{sSO}, s{sSO}, s{sIA if e % 2 == 0 else sIB}')
    a(f's_mov_b32 s{sEV}, 8')
    a('s_branch L_k2_loop')
    a.label('L_k2_ev8')
    a(f's_mov_b32 s{sIA}, 0x05040100')
    a(f's_mov_b32 s{sIB}, 0x07060302')
    a(f's_waitcnt vmcnt(0)')
    for e in range(8):
        t = TR + 4 * (e % 2)
        for q in range(4):
            a(f'v_perm_b32 v{t+q}, v{R+4*(2*q+1)+e//2}, v{R+4*(2*q)+e//2}, s{sIA if e % 2 == 0 else sIB}')
        a(f'buffer_store_dwordx4 {vr(t,4)}, v{vD0 if e < 4 else vD1}, {sr(SWS,4)}, s{sDO} offen offset:{(e&3)*16}')
    a(f's_mov_b32 s{sEV}, 16')
    a('s_branch L_k2_loop')
    a.label('L_k2_fin')
    a(f'v_cvt_pk_bf16_f32 v{P+7}, v{S1+14}, v{S1+15}')
    a(f's_waitcnt lgkmcnt(0)')
    a(f'{MF32} {vr(O,16)}, {vr(V1,4)}, {vr(P+4,4)}, {vr(O,16)}')
    a(f'v_lshl_add_u32 v8, v{vHH}, 1, v{vHL}')
    a(f'v_lshl_add_u32 v8, v8, 4, v{vT}')
    a(f'v_lshlrev_b32 v8, 4, v8')
    a(f'v_lshlrev_b32 v9, 4, v{vT}')
    a(f'v_lshl_add_u32 v9, v{vHH}, 2, v9')
    a(f's_lshl_b32 s{sT0}, s{sS}, 10')
    a(f's_add_u32 s{sT0}, s{sT0}, s{sTT}')
    a(f's_add_u32 s{sT0}, s{sT0}, {hx(OOFF)}')
    a(f's_lshr_b32 s{sT1}, s{sS}, 1')
    a(f's_lshl_b32 s{sT1}, s{sT1}, 8')
    a(f's_and_b32 s40, s{sS}, 1')
    a(f's_lshl_b32 s40, s40, 3')
    a(f's_add_u32 s{sT1}, s{sT1}, s40')
    a(f's_add_u32 s{sT1}, s{sT1}, s{sTT}')
    a(f's_add_u32 s{sT1}, s{sT1}, {hx(OOFF + 16*1024)}')
    a(f'v_max3_f32 v10, |v{O}|, |v{O+1}|, |v{O+2}|')
    for r in range(3, 10, 2): a(f'v_max3_f32 v10, v10, |v{O+r}|, |v{O+min(r+1,9)}|')
    a(f'v_add_f32 v11, v{O}, v{O+1}')
    for r in range(2, 10): a(f'v_add_f32 v11, v11, v{O+r}')
    a(f'v_rcp_f32 v15, v{O+10}')
    a(f'v_mov_b32 v{vM}, {hx(f2u(2.0**40))}')
    a(f'v_cmp_nle_f32 vcc, v{O+10}, v{vM}')
    a(f'v_mov_b32 v{vM}, 0x7f000000')
    a(f'v_cmp_nle_f32 s[40:41], v10, v{vM}')
    a(f'v_cmp_u_f32 s[42:43], v11, v11')
    a(f's_or_b64 vcc, vcc, s[40:41]')
    a(f's_or_b64 vcc, vcc, s[42:43]')
    a(f's_cmp_eq_u64 vcc, 0')
    a(f's_cbranch_scc0 L_k2_fb')
    a.label('L_k2_out')
    for r in range(10): a(f'v_mul_f32 v{O+r}, v{O+r}, v15')
    for k in range(5): a(f'v_cvt_pk_bf16_f32 v{P+k}, v{O+2*k}, v{O+2*k+1}')
    a(f'buffer_store_dwordx4 {vr(P,4)}, v8, {sr(SWS,4)}, s{sT0} offen')
    a('s_mov_b32 exec_hi, 0')
    a(f'buffer_store_dword v{P+4}, v9, {sr(SWS,4)}, s{sT1} offen')
    a('s_branch L_k2_done')
    a.label('L_k2_fb')
    a(f's_cmp_eq_u32 s{sFIN}, 1')
    a(f's_cbranch_scc1 L_k2_out')
    a(f's_mov_b32 s{sFIN}, 1')
    for r in (vAK, vA2, vAV): a(f'v_subrev_u32 v{r}, {16*GRP}, v{r}')
    a(f'v_mov_b32 v{QA}, v{vQ2}'); a(f'v_mov_b32 v{QA+1}, 0')
    a(f'v_mov_b32 v{QB}, 0'); a(f'v_mov_b32 v{QB+1}, v{vQ2}')
    a(f'v_mov_b32 v{vM}, 0xff7fffff')
    a(f'v_mov_b32 v8, v{vAK}'); a(f'v_mov_b32 v9, v{vA2}')
    a(f's_mov_b32 s{sG}, 0')
    a.label('L_k2_fbl')
    a(f'ds_read_b128 {vr(K2,4)}, v9')
    for T in range(4):
        a(f'ds_read_b128 {vr(K16,4)}, v8 offset:{T*1024}')
        a(f's_waitcnt lgkmcnt(0)')
        a(f'{MF32} {vr(S0,16)}, {vr(K16,4)}, {vr(Q,4)}, 0')
        a(f'{MF8} {vr(S0,16)}, {vr(K2+2*(T//2),2)}, {vr(QA if T % 2 == 0 else QB,2)}, {vr(S0,16)}')
        for r in range(0, 16, 2): a(f'v_max3_f32 v{vM}, v{vM}, v{S0+r}, v{S0+r+1}')
    a(f'v_add_u32 v8, {GRP}, v8'); a(f'v_add_u32 v9, {GRP}, v9')
    a(f's_add_u32 s{sG}, s{sG}, 1')
    a(f's_cmp_lg_u32 s{sG}, 16')
    a(f's_cbranch_scc1 L_k2_fbl')
    a(f'ds_read_b128 {vr(K16,4)}, v{vAK}')
    a(f'ds_read_b128 {vr(K2,4)}, v{vA2}')
    a(f's_mov_b32 s{sEV}, 16')
    a(f's_waitcnt lgkmcnt(0)')
    a('s_branch L_k2_setm')
    a.label('L_k2_done')
    end(a, name, 1, SWS)
    return dict(name=name, grid=256, block=512, lds=163840, vgpr=144, acc=144)

def k3(a):
    name = 'k3_kernel'
    begin(a, name, 256)
    SX, SWS = 4, 8
    a('s_load_dwordx2 s[4:5], s[0:1], 0')
    a('s_load_dwordx2 s[8:9], s[0:1], 80')
    srd(a, SX, ACT); srd(a, SWS, 0x10000000)
    sTB, sJ, sW, sTT, sT0, sT1, sO = 30, 31, 32, 33, 34, 35, 36
    tbj(a, sTB, sJ, sT0)
    vL, vG, vT, vA, vA4 = 1, 2, 3, 10, 11
    a(f'v_lshrrev_b32 v4, 6, v0')
    a(f'v_and_b32 v{vL}, 63, v0')
    a(f'v_readfirstlane_b32 s{sW}, v4')
    a(f'v_lshlrev_b32 v{vA}, 4, v{vL}')
    a(f's_lshl_b32 s{sTT}, s{sTB}, 2')
    a(f's_add_u32 s{sTT}, s{sTT}, s{sW}')
    a(f's_mul_i32 s{sTT}, s{sTT}, 18432')
    a(f's_add_u32 s{sO}, s{sTT}, {hx(OOFF)}')
    a(f's_lshl_b32 s{sT0}, s{sW}, 10')
    a(f's_mov_b32 m0, s{sT0}')
    a(f's_mul_i32 s{sT1}, s{sJ}, {WOSL}')
    a(f's_add_u32 s{sT1}, s{sT1}, s{sT0}')
    a(f's_add_u32 s{sT1}, s{sT1}, {hx(WOF)}')
    X, WR, ACC, RES = 32, 104, 144, 164
    a('s_waitcnt lgkmcnt(0)')
    order = []
    nd = 0
    for s in range(18):
        a(f'buffer_load_dwordx4 {vr(X+4*s,4)}, v{vA}, {sr(SWS,4)}, s{sO} offen offset:{(s%4)*1024}')
        order.append(('x', s))
        if s % 4 == 3: a(f's_add_u32 s{sO}, s{sO}, 4096')
        while nd < 21 and nd * 4096 < (s + 1) * 4608:
            a(f'buffer_load_dwordx4 v{vA}, {sr(SWS,4)}, s{sT1} offen lds')
            order.append(('w', nd))
            nd += 1
            if nd < 21:
                a(f's_add_u32 m0, m0, 4096')
                a(f's_add_u32 s{sT1}, s{sT1}, 4096')
    assert nd == 21
    a(f'v_lshrrev_b32 v{vG}, 4, v{vL}')
    a(f'v_and_b32 v{vT}, 15, v{vL}')
    a(f'v_mul_u32_u24 v4, 1152, v{vT}')
    a(f'v_lshl_add_u32 v5, v{vG}, 3, v4')
    a(f'v_lshl_add_u32 v4, v{vG}, 4, v4')
    a(f's_mul_i32 s{sT0}, s{sJ}, 144')
    a(f's_add_u32 s{sT0}, s{sT0}, s{sTT}')
    a(f'buffer_load_dwordx4 {vr(RES,4)}, v4, {sr(SX,4)}, s{sT0} offen')
    a(f'buffer_load_dwordx4 {vr(RES+4,4)}, v4, {sr(SX,4)}, s{sT0} offen offset:64')
    a(f'buffer_load_dwordx2 {vr(RES+8,2)}, v5, {sr(SX,4)}, s{sT0} offen offset:128')
    order += [('r', 0)] * 3
    a(f'v_and_b32 v4, 7, v{vL}')
    a(f'v_lshl_add_u32 v4, v{vG}, 3, v4')
    a(f'v_lshlrev_b32 v{vA4}, 4, v4')
    vB, vB4 = 12, 13
    a(f'v_add_u32 v{vB}, {9*4608}, v{vA}')
    a(f'v_add_u32 v{vB4}, {9*4608}, v{vA4}')
    def stage_wait(slast):
        idx = max(i for i, o in enumerate(order) if (o[0] == 'x' and o[1] <= slast) or (o[0] == 'w' and o[1] * 4096 < (slast + 1) * 4608))
        a(f's_waitcnt vmcnt({len(order) - 1 - idx})')
        a('s_barrier')
    D = 10
    def rd(f):
        s, ct = divmod(f, 5)
        if f == 0: stage_wait(8)
        if f == 45: stage_wait(17)
        ad = (vA if ct < 4 else vA4) if s < 9 else (vB if ct < 4 else vB4)
        a(f'ds_read_b128 {vr(WR+4*(f%D),4)}, v{ad} offset:{(s%9)*4608+ct*1024}')
    for f in range(D): rd(f)
    for f in range(90):
        s, ct = divmod(f, 5)
        a(f's_waitcnt lgkmcnt({min(D - 1, 89 - f)})')
        a(f'{MF16} {vr(ACC+4*ct,4)}, {vr(WR+4*(f%D),4)}, {vr(X+4*s,4)}, {"0" if s == 0 else vr(ACC+4*ct,4)}')
        if f + D < 90: rd(f + D)
    a(f's_mul_i32 s{sT0}, s{sJ}, {9*256}')
    a(f's_add_u32 s{sT0}, s{sT0}, s{sTT}')
    a(f's_add_u32 s{sT0}, s{sT0}, {hx(HOFF)}')
    a(f'v_lshlrev_b32 v4, 4, v{vT}')
    a(f'v_lshl_add_u32 v4, v{vG}, 3, v4')
    a('s_waitcnt vmcnt(0)')
    for k in range(10):
        a(f'v_lshlrev_b32 v6, 16, v{RES+k}')
        a(f'v_and_b32 v7, 0xffff0000, v{RES+k}')
        a(f'v_add_f32 v6, v6, v{ACC+2*k}')
        a(f'v_add_f32 v7, v7, v{ACC+2*k+1}')
        a(f'v_cvt_pk_bf16_f32 v{RES+k}, v6, v7')
        if k in (3, 7):
            a(f'buffer_store_dwordx4 {vr(RES+k-3,4)}, v{vA}, {sr(SWS,4)}, s{sT0} offen offset:{(k//4)*1024}')
    a('s_mov_b32 exec_hi, 0')
    a(f'buffer_store_dwordx2 {vr(RES+8,2)}, v4, {sr(SWS,4)}, s{sT0} offen offset:2048')
    end(a, name, 2, SWS)
    return dict(name=name, grid=256, block=256, lds=86016, vgpr=176, acc=176)

def k4(a):
    name = 'k4_kernel'
    begin(a, name, 256)
    SWS = 4
    a('s_load_dwordx2 s[4:5], s[0:1], 80')
    srd(a, SWS, 0x10000000)
    sTB, sJ, sW, sT0, sT1, sH, sP1, sP2, sSG, sW2, sIT, sLO, sHI, sST, sSS = 30, 31, 32, 33, 34, 35, 36, 37, 38, 39, 40, 41, 42, 43, 44
    a(f's_and_b32 s{sJ}, s2, 7')
    a(f's_lshr_b32 s{sTB}, s2, 3')
    vL = 1
    VA = 2
    a(f'v_lshrrev_b32 v8, 6, v0')
    a(f'v_and_b32 v{vL}, 63, v0')
    a(f'v_readfirstlane_b32 s{sW}, v8')
    a(f'v_lshlrev_b32 v{VA}, 4, v{vL}')
    for k in range(1, 5): a(f'v_add_u32 v{VA+k}, {4096*k}, v{VA}')
    XB = 48
    RV = 120
    ACC = 224
    def Breg(b): return vr(4*b, 4, 'a') if b < 54 else vr(XB + 4*(b-54), 4)
    def Rreg(q): return vr(216 + 4*q, 4, 'a') if q < 10 else vr(RV + 4*(q-10), 4)
    C1, PK, TMP, vHW, vHS = 8, 12, 28, 44, 45
    a(f's_lshl_b32 s{sT0}, s{sTB}, 2')
    a(f's_add_u32 s{sT0}, s{sT0}, s{sW}')
    a(f's_mul_i32 s{sH}, s{sT0}, 18432')
    a(f's_add_u32 s{sH}, s{sH}, {hx(HOFF)}')
    a(f's_and_b32 s{sT1}, s{sW}, 1')
    a(f's_mul_i32 s{sT0}, s{sW}, 9')
    a(f's_add_u32 s{sT0}, s{sT0}, s{sT1}')
    a(f's_cmp_eq_u32 s{sT1}, 0')
    a(f's_cselect_b32 s{sSG}, 8, -1')
    a(f's_add_u32 s{sSG}, s{sSG}, s{sT0}')
    sC0, sCS = 45, 46
    a(f's_lshr_b32 s{sC0}, s{sT0}, 1')
    a(f's_lshr_b32 s{sCS}, s{sSG}, 1')
    a(f's_mul_i32 s{sP1}, s{sJ}, 36')
    a(f's_add_u32 s{sSG}, s{sSG}, s{sP1}')
    a(f's_add_u32 s{sP1}, s{sP1}, s{sT0}')
    a(f's_mul_i32 s{sP1}, s{sP1}, 18432')
    a(f's_mul_i32 s{sSG}, s{sSG}, 18432')
    a(f's_add_u32 s{sW2}, s{sP1}, {hx(W2F)}')
    a(f's_add_u32 s{sP1}, s{sP1}, {hx(W1F)}')
    a(f's_add_u32 s{sSG}, s{sSG}, {hx(W1F)}')
    a(f's_add_u32 s{sP2}, s{sP1}, 18432')
    a('s_waitcnt lgkmcnt(0)')
    def ld(dst, s, so):
        return f'buffer_load_dwordx4 {dst}, v{VA + s//4}, {sr(SWS,4)}, s{so} offen offset:{(s%4)*1024}'
    for s in range(18): a(ld(vr(XB+4*s,4), s, sH))
    for s in range(18): a(ld(Rreg(s), s, sP1))
    for s in range(18): a(ld(Rreg(18+s), s, sP2))
    a(f's_add_u32 s{sP2}, s{sP2}, 18432')
    a(f's_mov_b32 s{sLO}, 0x00003f80'); a(f's_mov_b32 s{sHI}, 0x3f800000')
    HB, CB = 73728, 147456
    a(f's_lshl_b32 s{sT0}, s{sW}, 10')
    a(f'v_add_u32 v{vHW}, s{sT0}, v{VA}')
    a(f'v_add_u32 v{vHS}, 36864, v{vHW}')
    def post(s):
        a(f'ds_write_b128 v{vHW if s < 9 else vHS}, {vr(XB+4*s,4)} offset:{(s%9)*4096}')
    ln_center(a, XB, ACC, ACC+4, ACC+8, TMP, sLO, sHI, lambda s: a(f's_waitcnt vmcnt({36 + 17 - s})'), post)
    ln_rstd(a, ACC+8, vL, TMP, 48)
    a(f'v_and_b32 v{TMP}, 15, v{vL}')
    a(f'v_lshlrev_b32 v{TMP}, 2, v{TMP}')
    a(f'v_add_u32 v{TMP}, {CB}, v{TMP}')
    a(f's_lshl_b32 s{sT0}, s{sW}, 6')
    a(f'v_mul_f32 v{ACC+8}, {hx(f2u(-LOG2E))}, v{ACC+8}')
    a(f'v_add_u32 v{TMP+1}, s{sT0}, v{TMP}')
    a(f'ds_write_b32 v{TMP+1}, v{ACC+8}')
    a(f's_lshl_b32 s{sT0}, s{sC0}, 12')
    a(f's_add_u32 s{sT0}, s{sT0}, {HB}')
    a(f'v_add_u32 v{vHW}, s{sT0}, v{VA}')
    a(f's_lshl_b32 s{sT0}, s{sCS}, 12')
    a(f's_lshl_b32 s{sT1}, s{sT1}, 3')
    a(f's_add_u32 s{sT0}, s{sT0}, s{sT1}')
    a(f's_add_u32 s{sT0}, s{sT0}, {HB}')
    a(f'v_add_u32 v{vHS}, s{sT0}, v{VA}')
    a(f's_mul_i32 s{sST}, s{sJ}, {ACT}')
    a(f's_mul_i32 s{sT0}, s{sTB}, {4*18432}')
    a(f's_add_u32 s{sST}, s{sST}, s{sT0}')
    a(f's_add_u32 s{sST}, s{sST}, {hx(PART)}')
    a(f's_lshl_b32 s{sT0}, s{sCS}, 10')
    a(f's_add_u32 s{sSS}, s{sST}, s{sT0}')
    a(f's_add_u32 s{sSS}, s{sSS}, s{sT1}')
    a(f's_lshl_b32 s{sT0}, s{sC0}, 10')
    a(f's_add_u32 s{sST}, s{sST}, s{sT0}')
    VS = 220
    VS = 40
    for tt in range(4): a(f'v_add_u32 v{VS+tt}, {tt*18432}, v{VA}')
    vRB, vRB2 = 46, 47
    a('s_waitcnt lgkmcnt(0)')
    a('s_barrier')
    for tt in range(4): a(f'ds_read_b32 v{C1+tt}, v{TMP} offset:{64*tt}')

    def silu_ops(acc, half, single=False):
        ops = []
        def stage(i):
            tt, r = divmod(i, 4)
            x = acc + i; t = TMP + (i % 4)
            return [f'v_mul_f32 v{x}, v{x}, v{C1+tt}', f'v_exp_f32 v{t}, v{x}', f'v_add_f32 v{t}, 1.0, v{t}',
                    f'v_rcp_f32 v{t}, v{t}', f'v_mul_f32 v{x}, v{x}, v{t}']
        for i in range(0, 16, 2):
            A, B = stage(i), stage(i + 1)
            for p, q in zip(A, B): ops += [p, q]
            tt = i // 4
            ops.append(f'v_cvt_pk_bf16_f32 v{PK+4*tt+2*half+(i%4)//2}, v{acc+i}, v{acc+i+1}')
            if i % 4 == 2:
                if single: ops.append(f'ds_write_b64 v{vHS}, {vr(PK+4*tt,2)} offset:{tt*1024}')
                elif half == 1: ops.append(f'ds_write_b128 v{vHW}, {vr(PK+4*tt,4)} offset:{tt*1024}')
        return ops
    def out_ops(acc, half, single=False):
        ops = []
        for tt in range(4):
            for k in range(2):
                ops.append(f'v_cvt_pk_bf16_f32 v{PK+4*tt+2*half+k}, v{acc+4*tt+2*k}, v{acc+4*tt+2*k+1}')
            if single: ops.append(f'buffer_store_dwordx2 {vr(PK+4*tt,2)}, v{VS+tt}, {sr(SWS,4)}, s{sSS} offen sc1')
            elif half == 1: ops.append(f'buffer_store_dwordx4 {vr(PK+4*tt,4)}, v{VS+tt}, {sr(SWS,4)}, s{sST} offen sc1')
        return ops

    def tile(slot0, acc, so, fill, breads=None, extra_vm=0, fill_start=3):
        nf = len(fill); fi = 0
        gaps = 72 - fill_start
        stores_seen = 0
        for s in range(18):
            for tt in range(4):
                g = 4 * s + tt
                if tt == 0:
                    a(f's_waitcnt vmcnt({extra_vm(s, stores_seen)})')
                if breads is not None:
                    a(f's_waitcnt lgkmcnt({min(11, 71 - g)})')
                a(f'{MF16} {vr(acc+4*tt,4)}, {Rreg(slot0+s)}, {Breg(g)}, {"0" if s == 0 else vr(acc+4*tt,4)}')
                if breads is not None and g + 12 < 72: breads(g + 12)
                if tt == 3 and so is not None: a(ld(Rreg(slot0+s), s, so))
                if g >= fill_start:
                    want = ((g - fill_start + 1) * nf + gaps - 1) // gaps
                    while fi < want:
                        a(fill[fi])
                        if fill[fi].startswith('buffer_store'): stores_seen += 1
                        fi += 1
        assert fi == nf
    def mk_breads(base):
        a(f'v_add_u32 v{vRB}, {base}, v{VA}')
        a(f'v_add_u32 v{vRB2}, {base+36864}, v{VA}')
        def br(b): a(f'ds_read_b128 {Breg(b)}, v{vRB if b < 36 else vRB2} offset:{(b%36)*1024}')
        for b in range(12): br(b)
        return br
    A0, A1 = ACC, ACC + 16
    br = mk_breads(0)
    tile(0, A0, sP2, [], breads=br, extra_vm=lambda s, st: 35)
    a(f's_add_u32 s{sP1}, s{sP2}, 18432')
    a(f's_add_u32 s{sP2}, s{sP1}, 18432')
    a(f's_mov_b32 s{sIT}, 0')
    a.raw('.p2align 6')
    a.label('L_k4_g1')
    tile(18, A1, sP1, silu_ops(A0, 0), extra_vm=lambda s, st: 35)
    tile(0, A0, sP2, silu_ops(A1, 1), extra_vm=lambda s, st: 35)
    a(f'v_add_u32 v{vHW}, 4096, v{vHW}')
    a(f's_add_u32 s{sIT}, s{sIT}, 1')
    a(f's_add_u32 s{sP1}, s{sP1}, 36864')
    a(f's_cmp_eq_u32 s{sIT}, 3')
    a(f's_cselect_b32 s{sP1}, s{sW2}, s{sP1}')
    a(f's_add_u32 s{sP2}, s{sP1}, 18432')
    a(f's_cmp_eq_u32 s{sIT}, 2')
    a(f's_cselect_b32 s{sP2}, s{sSG}, s{sP2}')
    a(f's_cmp_lg_u32 s{sIT}, 4')
    a(f's_cbranch_scc1 L_k4_g1')
    for op in silu_ops(A0, 0, single=True): a(op)
    a('s_waitcnt lgkmcnt(0)')
    a('s_barrier')
    br = mk_breads(HB)
    tile(18, A1, sP1, [], breads=br, extra_vm=lambda s, st: 35)
    a(f's_add_u32 s{sP1}, s{sP1}, 18432')
    a(f's_add_u32 s{sP2}, s{sP1}, 18432')
    a(f's_add_u32 s{sSG}, s{sSG}, {hx(W2F - W1F)}')
    a(f's_mov_b32 s{sIT}, 0')
    a.raw('.p2align 6')
    a.label('L_k4_g2')
    tile(0, A0, sP1, out_ops(A1, 0), extra_vm=lambda s, st: 35)
    tile(18, A1, sP2, out_ops(A0, 1), extra_vm=lambda s, st: 35 + st)
    a(f's_add_u32 s{sST}, s{sST}, 1024')
    a(f's_add_u32 s{sIT}, s{sIT}, 1')
    a(f's_add_u32 s{sP1}, s{sP1}, 36864')
    a(f's_cmp_eq_u32 s{sIT}, 3')
    a(f's_cselect_b32 s{sP1}, {hx(OOB)}, s{sP1}')
    a(f's_add_u32 s{sP2}, s{sP1}, 18432')
    a(f's_cmp_eq_u32 s{sIT}, 2')
    a(f's_cselect_b32 s{sP2}, s{sSG}, s{sP2}')
    a(f's_cmp_lg_u32 s{sIT}, 4')
    a(f's_cbranch_scc1 L_k4_g2')
    for op in out_ops(A1, 0, single=True): a(op)
    end(a, name, 3, SWS)
    return dict(name=name, grid=256, block=256, lds=147712, vgpr=512, acc=256)

def k5(a):
    name = 'k5_kernel'
    begin(a, name, 256)
    SWS, SO = 4, 8
    a('s_load_dwordx2 s[4:5], s[0:1], 80')
    a('s_load_dwordx2 s[8:9], s[0:1], 64')
    srd(a, SWS, 0x10000000); srd(a, SO, ACT)
    sW, sID, sT0, sT1, sLO, sHI = 30, 31, 32, 33, 34, 35
    a(f'v_lshrrev_b32 v4, 6, v0')
    a(f'v_lshlrev_b32 v2, 4, v0')
    a(f'v_readfirstlane_b32 s{sW}, v4')
    a(f's_mul_i32 s{sT0}, s2, {9*1024}')
    a(f's_add_u32 s{sT1}, s{sT0}, {hx(HOFF)}')
    a(f's_add_u32 s{sT0}, s{sT0}, {hx(PART)}')
    a('s_waitcnt lgkmcnt(0)')
    PR, HR, AC = 16, 48, 52
    for p in range(8):
        a(f'buffer_load_dwordx4 {vr(PR+4*p,4)}, v2, {sr(SWS,4)}, s{sT0} offen')
        if p < 7: a(f's_add_u32 s{sT0}, s{sT0}, {ACT}')
    a(f'buffer_load_dwordx4 {vr(HR,4)}, v2, {sr(SWS,4)}, s{sT1} offen')
    a(f's_lshr_b32 s{sT0}, s2, 1')
    a(f's_mul_i32 s{sT0}, s{sT0}, 18432')
    a(f's_and_b32 s{sT1}, s2, 1')
    a(f's_mul_i32 s{sT1}, s{sT1}, 9')
    a(f's_add_u32 s{sT1}, s{sT1}, s{sW}')
    a(f's_lshl_b32 s{sT1}, s{sT1}, 6')
    a(f's_add_u32 s{sT0}, s{sT0}, s{sT1}')
    a(f'v_and_b32 v4, 15, v0')
    a(f'v_bfe_u32 v5, v0, 4, 2')
    a(f'v_mul_u32_u24 v4, 1152, v4')
    a(f'v_lshl_add_u32 v4, v5, 4, v4')
    a(f's_mov_b32 s{sLO}, 0x00003f80'); a(f's_mov_b32 s{sHI}, 0x3f800000')
    for p in range(8):
        a(f's_waitcnt vmcnt({8-p})')
        for r in range(4):
            for h in range(2):
                a(f'v_dot2_f32_bf16 v{AC+2*r+h}, v{PR+4*p+r}, s{sLO+h}, {"0" if p == 0 else "v%d" % (AC+2*r+h)}')
    a('s_waitcnt vmcnt(0)')
    for r in range(4):
        a(f'v_lshlrev_b32 v{8+2*r}, 16, v{HR+r}')
        a(f'v_and_b32 v{9+2*r}, 0xffff0000, v{HR+r}')
    for i in range(8): a(f'v_fmac_f32 v{8+i}, {hx(f2u(-math.log(2.0)))}, v{AC+i}')
    for r in range(4): a(f'v_cvt_pk_bf16_f32 v{HR+r}, v{8+2*r}, v{9+2*r}')
    a(f'buffer_store_dwordx4 {vr(HR,4)}, v4, {sr(SO,4)}, s{sT0} offen')
    end(a, name, 4, SWS)
    return dict(name=name, grid=256, block=576, lds=0, vgpr=64, acc=64)

def build(kernels):
    a = Asm()
    infos = [k(a) for k in kernels]
    hdr = [f'; @launch kernel={i["name"]} grid=({i["grid"]},1,1) block=({i["block"]},1,1) lds={i["lds"]}' for i in infos]
    hdr += ['.amdgcn_target "amdgcn-amd-amdhsa--gfx950"', '.text'] + [f'.globl {i["name"]}' for i in infos]
    tail = ['.section .rodata,"a"']
    for i in infos:
        tail += ['.p2align 6', f'.amdhsa_kernel {i["name"]}', f'  .amdhsa_next_free_vgpr {i["vgpr"]}', '  .amdhsa_next_free_sgpr 102',
                 f'  .amdhsa_accum_offset {i["acc"]}', '  .amdhsa_group_segment_fixed_size 0', '  .amdhsa_kernarg_size 88',
                 '  .amdhsa_user_sgpr_count 2', '  .amdhsa_user_sgpr_kernarg_segment_ptr 1', '  .amdhsa_system_sgpr_workgroup_id_x 1',
                 '.end_amdhsa_kernel']
    print('nops inserted:', a.nops, file=sys.stderr)
    return '\n'.join(hdr) + '\n' + a.text() + '\n'.join(tail) + '\n'

if __name__ == '__main__':
    out = sys.argv[1]
    if len(sys.argv) > 2 and 'stamp' in sys.argv[2:]: STAMP = True
    open(out, 'w').write(build([k1, k2, k3, k4, k5]))
```

```python
import sys, math, struct
from asmlib import Asm, vr, sr

NAME = 'sequential_preLN__grouped_kv_mqa__dense_activation_silu__prompt'
QOFF, KVOFF, OOFF, HOFF, WOF, W1F, W2F, PART = 0x0, 0x300000, 0x400000, 0x700000, 0xA00000, 0x1000000, 0x1600000, 0x2000000
ACT = 2048 * 1152
GRP = 9472
VFR = 608
WOSL = 18 * 4608
OOB = 0x40000000
MF16 = 'v_mfma_f32_16x16x32_bf16'
MF32 = 'v_mfma_f32_32x32x16_bf16'
MF8 = 'v_mfma_f32_32x32x8_bf16'
def f2u(x): return struct.unpack('<I', struct.pack('<f', x))[0]
def hx(x): return f'0x{x & 0xffffffff:08x}'
LOG2E = 1.4426950408889634
STAMP = False
OPT = set()

def srd(a, b, n):
    a(f's_mov_b32 s{b+2}, {hx(n)}')
    a(f's_mov_b32 s{b+3}, 0x00020000')

def begin(a, name, nwg):
    a.raw('.p2align 8')
    a.raw(f'.type {name},@function')
    a.raw(f'{name}:')
    a.reset_hist()
    a(f's_cmp_ge_u32 s2, {nwg}')
    a(f's_cbranch_scc1 L_end_{name}')
    global NST
    NST = 0
    if STAMP:
        a('s_memtime s[74:75]')
        for i in range(76, 100, 2): a(f's_mov_b32 s{i}, 0')
    stamp(a)

NST = 0
def stamp(a, idx=None):
    global NST
    if idx is None: idx = NST
    NST = idx + 1
    assert idx < 11
    if STAMP: a(f's_{"memtime" if "cyc" in OPT and idx > 0 else "memrealtime"} s[{76+2*idx}:{77+2*idx}]')

def end(a, name, kidx, ws):
    if STAMP:
        a('s_waitcnt vmcnt(0) lgkmcnt(0)')
        a('s_memrealtime s[98:99]')
        a('s_memtime s[72:73]')
        a('s_getreg_b32 s100, hwreg(HW_REG_XCC_ID)')
        a('s_mov_b64 exec, -1')
        a('v_lshrrev_b32 v2, 6, v0')
        a('v_lshlrev_b32 v2, 6, v2')
        a(f's_lshl_b32 s3, s2, 10')
        a(f's_add_u32 s3, s3, {hx(0x8000000 + kidx * 0x80000)}')
        a('s_waitcnt lgkmcnt(0)')
        a('s_sub_u32 s72, s72, s74')
        if 'cyc' in OPT:
            for i in range(1, 11):
                a(f's_cmp_eq_u32 s{76+2*i}, 0')
                a(f's_cselect_b32 s73, 0, s74')
                a(f's_sub_u32 s{76+2*i}, s{76+2*i}, s73')
        for q in range(3):
            for r in range(4): a(f'v_mov_b32 v{4+r}, s{76+8*q+2*r}')
            a(f'buffer_store_dwordx4 v[4:7], v2, {sr(ws,4)}, s3 offen offset:{16*q}')
            a('s_nop 4')
        a('v_mov_b32 v4, s72'); a('v_mov_b32 v5, s100'); a('v_mov_b32 v6, s100'); a('v_mov_b32 v7, s101')
        a(f'buffer_store_dwordx4 v[4:7], v2, {sr(ws,4)}, s3 offen offset:48')
    a.label(f'L_end_{name}')
    a('s_endpgm')

def tbj(a, stb, sj, st):
    a(f's_and_b32 s{st}, s2, 7')
    a(f's_lshl_b32 s{stb}, s{st}, 2')
    a(f's_lshr_b32 s{st}, s2, 6')
    a(f's_add_u32 s{stb}, s{stb}, s{st}')
    a(f's_bfe_u32 s{sj}, s2, 0x30003')

def ln_center(a, X, vones, vmean, vvar, vt, sc_lo, sc_hi, waits, post=None):
    for r in range(4): a(f'v_mov_b32 v{vones+r}, 0x3f803f80')
    for s in range(18):
        waits(s)
        a(f'{MF16} {vr(vmean,4)}, {vr(vones,4)}, {vr(X+4*s,4)}, {"0" if s == 0 else vr(vmean,4)}')
    a(f'v_mul_f32 v{vmean}, {hx(f2u(-1.0/576))}, v{vmean}')
    def d(r):
        t = vt + 2 * (r % 3)
        a(f'v_dot2_f32_bf16 v{t}, v{X+r}, s{sc_lo}, v{vmean}')
        a(f'v_dot2_f32_bf16 v{t+1}, v{X+r}, s{sc_hi}, v{vmean}')
    def c(r):
        t = vt + 2 * (r % 3)
        a(f'v_cvt_pk_bf16_f32 v{X+r}, v{t}, v{t+1}')
    d(0); d(1)
    for r in range(72):
        if r + 2 < 72: d(r + 2)
        c(r)
        if r % 4 == 0 and r >= 4:
            s = r // 4 - 1
            a(f'{MF16} {vr(vvar,4)}, {vr(X+4*s,4)}, {vr(X+4*s,4)}, {"0" if s == 0 else vr(vvar,4)}')
            if post: post(s)
    a(f'{MF16} {vr(vvar,4)}, {vr(X+68,4)}, {vr(X+68,4)}, {vr(vvar,4)}')
    if post: post(17)

def ln_rstd(a, vvar, vlane, vt, sm):
    a(f's_mov_b32 s{sm}, 0xaaaaaaaa'); a(f's_mov_b32 s{sm+1}, 0xaaaaaaaa')
    a(f's_mov_b32 s{sm+2}, 0xcccccccc'); a(f's_mov_b32 s{sm+3}, 0xcccccccc')
    a(f'v_and_b32 v{vt}, 15, v{vlane}')
    a(f'v_lshrrev_b32 v{vt+1}, 2, v{vt}')
    a(f'v_lshl_add_u32 v{vt}, v{vt+1}, 4, v{vt}')
    a(f'v_lshlrev_b32 v{vt}, 2, v{vt}')
    a(f'v_cndmask_b32 v{vvar}, v{vvar}, v{vvar+1}, {sr(sm,2)}')
    a(f'v_cndmask_b32 v{vvar+2}, v{vvar+2}, v{vvar+3}, {sr(sm,2)}')
    a(f'v_cndmask_b32 v{vvar}, v{vvar}, v{vvar+2}, {sr(sm+2,2)}')
    a(f'ds_bpermute_b32 v{vvar}, v{vt}, v{vvar}')
    a(f'v_mov_b32 v{vt+1}, {hx(f2u(1e-5))}')
    a('s_waitcnt lgkmcnt(0)')
    a(f'v_fmac_f32 v{vt+1}, {hx(f2u(1.0/576))}, v{vvar}')
    a(f'v_rsq_f32 v{vvar}, v{vt+1}')

def k1(a):
    name = 'k1_kernel'
    begin(a, name, 256)
    SX, SWQ, SKV, SWS = 4, 8, 12, 16
    a('s_load_dwordx2 s[4:5], s[0:1], 0')
    a('s_load_dwordx2 s[8:9], s[0:1], 8')
    a('s_load_dwordx4 s[24:27], s[0:1], 16')
    a('s_load_dwordx2 s[16:17], s[0:1], 80')
    srd(a, SX, ACT); srd(a, SWQ, 576 * 1152); srd(a, SKV, 576 * 36); srd(a, SWS, 0x10000000)
    sTB, sJ, sW, sTT, sT0, sT1, sXO = 30, 31, 32, 33, 34, 35, 36
    sM = 40
    sLO, sHI = 46, 47
    tbj(a, sTB, sJ, sT0)
    vL, vG, vT = 1, 2, 3
    a(f'v_lshrrev_b32 v4, 6, v0')
    a(f'v_and_b32 v{vL}, 63, v0')
    a(f'v_readfirstlane_b32 s{sW}, v4')
    a(f'v_lshrrev_b32 v{vG}, 4, v{vL}')
    a(f'v_and_b32 v{vT}, 15, v{vL}')
    vXO = 20
    a(f'v_mul_u32_u24 v{vXO}, 1152, v{vT}')
    a(f'v_lshl_add_u32 v21, v{vG}, 3, v{vXO}')
    a(f'v_lshl_add_u32 v{vXO}, v{vG}, 4, v{vXO}')
    a(f's_lshl_b32 s{sTT}, s{sTB}, 2')
    a(f's_add_u32 s{sTT}, s{sTT}, s{sW}')
    a(f's_mul_i32 s{sXO}, s{sTT}, {16*1152}')
    X = 32
    a('s_waitcnt lgkmcnt(0)')
    for s in range(18):
        a(f'buffer_load_dwordx4 {vr(X+4*s,4)}, v{vXO}, {sr(SX,4)}, s{sXO} offen offset:{64*s}')
    for m in range(5):
        a(f'v_add_u32 v4, {256*m}, v0')
        a(f'v_mul_u32_u24 v5, 6554, v4')
        a(f'v_lshrrev_b32 v5, 16, v5')
        a(f'v_mul_u32_u24 v6, 10, v5')
        a(f'v_sub_u32 v6, v4, v6')
        a(f'v_lshrrev_b32 v7, 1, v5')
        a(f'v_and_b32 v7, 4, v7')
        a(f'v_xor_b32 v5, v5, v7')
        a(f'v_mul_u32_u24 v5, 1152, v5')
        a(f'v_lshl_add_u32 v5, v6, 4, v5')
        a(f'v_cmp_eq_u32 vcc, 9, v6')
        a(f'v_mov_b32 v7, {hx(OOB)}')
        a(f's_add_u32 s{sT0}, s{sW}, {4*m}')
        a(f's_mul_i32 s{sT1}, s{sT0}, 13')
        a(f'v_cndmask_b32 v{10+m}, v5, v7, vcc')
        a(f's_lshr_b32 s{sT1}, s{sT1}, 6')
        a(f's_add_u32 s{sT0}, s{sT0}, s{sT1}')
        a(f's_lshl_b32 s{sM+m}, s{sT0}, 10')
    a(f's_cmp_lt_u32 s{sJ}, 3')
    a(f's_cselect_b32 s12, s24, s26')
    a(f's_cselect_b32 s13, s25, s27')
    a(f's_cselect_b32 s{sT0}, 0, 3')
    a(f's_sub_u32 s{sT0}, s{sJ}, s{sT0}')
    a(f's_lshl_b32 s{sT1}, s{sT0}, 4')
    a(f's_min_u32 s{sT1}, s{sT1}, 20')
    a(f's_mul_i32 s{sT0}, s{sW}, {32*36}')
    sKO = 37
    a(f's_add_u32 s{sKO}, s{sT0}, s{sT1}')
    a(f'v_mul_u32_u24 v15, 36, v{vL}')
    a(f'v_cmp_gt_u32 vcc, 32, v{vL}')
    sWO, sKM = 38, 39
    a(f's_mul_i32 s{sWO}, s{sJ}, 144')
    a(f's_mul_i32 s{sKM}, s{sW}, 6144')
    a(f'v_cndmask_b32 v15, v7, v15, vcc')
    ndma = 0
    for sb in range(5):
        for m in range(5 if sb < 4 else 3):
            a(f's_add_u32 m0, s{sM+m}, {sb*24576}')
            a(f'buffer_load_dwordx4 v{10+m}, {sr(SWQ,4)}, s{sWO} offen lds')
            ndma += 1
        a(f's_add_u32 m0, s{sKM}, {sb*24576+5120}')
        a(f's_add_u32 s{sWO}, s{sWO}, {128*1152}')
        a(f'buffer_load_dwordx4 v15, {sr(SKV,4)}, s{sKO} offen lds')
        a(f's_add_u32 s{sKO}, s{sKO}, {128*36}')
        ndma += 1
    A0, A1, A40, A41 = 16, 17, 18, 19
    a(f'v_bfe_u32 v4, v{vL}, 2, 2')
    a(f'v_lshl_add_u32 v4, v{vG}, 3, v4')
    a(f'v_and_b32 v5, 1, v{vG}')
    a(f'v_lshlrev_b32 v5, 2, v5')
    a(f'v_xor_b32 v6, v4, v5')
    a(f'v_xor_b32 v7, 4, v6')
    a(f'v_and_b32 v5, 3, v{vL}')
    a(f'v_lshlrev_b32 v5, 3, v5')
    a(f'v_mad_u32_u24 v{A0}, v6, 160, v5') if False else None
    a(f'v_mul_u32_u24 v{A0}, 160, v6'); a(f'v_add_u32 v{A0}, v{A0}, v5')
    a(f'v_mul_u32_u24 v{A1}, 160, v7'); a(f'v_add_u32 v{A1}, v{A1}, v5')
    a(f'v_lshl_add_u32 v4, v4, 4, v5')
    a(f'v_add_u32 v4, {5120-16-128}, v4')
    a(f'v_add_u32 v6, 64, v4')
    a(f'v_cmp_gt_u32 vcc, 16, v5')
    a(f's_mov_b32 s{sLO}, 0x00003f80'); a(f's_mov_b32 s{sHI}, 0x3f800000')
    a(f'v_cndmask_b32 v{A40}, v4, v{A0}, vcc')
    a(f'v_cndmask_b32 v{A41}, v6, v{A1}, vcc')
    WR, ACC, MEAN, VAR, ONES, TMP = 104, 132, 152, 156, 160, 22
    stamp(a)
    ln_center(a, X, ONES, MEAN, VAR, TMP, sLO, sHI, lambda s: (a(f's_waitcnt vmcnt({ndma + 17 - s})'), stamp(a) if s == 17 else None))
    stamp(a)
    a('s_waitcnt vmcnt(0)')
    stamp(a)
    a('s_barrier')
    stamp(a)
    D = 7
    def rd(f):
        s, ct = divmod(f, 5)
        if f == 45:
            for r in (A0, A1, A40, A41): a(f'v_add_u32 v{r}, {9*6144}, v{r}')
        off = (s % 9) * 6144 + ct * 32
        r = WR + 4 * (f % D)
        a(f'ds_read_b64_tr_b16 {vr(r,2)}, v{A0 if ct < 4 else A40} offset:{off}')
        a(f'ds_read_b64_tr_b16 {vr(r+2,2)}, v{A1 if ct < 4 else A41} offset:{off}')
    for f in range(D): rd(f)
    for f in range(90):
        s, ct = divmod(f, 5)
        a(f's_waitcnt lgkmcnt({2 * min(D - 1, 89 - f)})')
        a(f'{MF16} {vr(ACC+4*ct,4)}, {vr(WR+4*(f%D),4)}, {vr(X+4*s,4)}, {"0" if s == 0 else vr(ACC+4*ct,4)}')
        if f + D < 90: rd(f + D)
    stamp(a)
    ln_rstd(a, VAR, vL, TMP, 48)
    QS = LOG2E / math.sqrt(18.0)
    a(f'v_cmp_gt_u32 vcc, 32, v{vL}')
    a(f'v_mul_f32 v{VAR+1}, {hx(f2u(QS))}, v{VAR}')
    a(f's_mul_i32 s{sT0}, s{sJ}, 144')
    a(f's_add_u32 s{sXO}, s{sXO}, s{sT0}')
    if QOFF: a(f's_add_u32 s{sXO}, s{sXO}, {hx(QOFF)}')
    a(f'v_cndmask_b32 v{VAR+2}, v{VAR}, v{VAR+1}, vcc')
    for ct in range(5):
        for r in range(4):
            a(f'v_mul_f32 v{ACC+4*ct+r}, v{ACC+4*ct+r}, v{VAR+1 if ct < 4 else VAR+2}')
        a(f'v_cvt_pk_bf16_f32 v{ACC+4*ct}, v{ACC+4*ct}, v{ACC+4*ct+1}')
        a(f'v_cvt_pk_bf16_f32 v{ACC+4*ct+1}, v{ACC+4*ct+2}, v{ACC+4*ct+3}')
        if ct == 4: a('s_mov_b32 exec_hi, 0')
        a(f'buffer_store_dwordx2 {vr(ACC+4*ct,2)}, v21, {sr(SWS,4)}, s{sXO} offen offset:{32*ct}')
    P0, P1 = ACC + 16, ACC + 17
    sGB = 38
    a('s_mov_b64 exec, -1')
    a(f's_lshr_b32 s{sT0}, s{sTT}, 3')
    a(f's_mul_i32 s{sGB}, s{sT0}, {GRP}')
    a(f's_add_u32 s{sGB}, s{sGB}, {hx(KVOFF)}')
    a(f's_cmp_gt_u32 s{sJ}, 2')
    a(f's_cbranch_scc1 L_k1_v')
    a(f's_and_b32 s{sT0}, s{sTT}, 1')
    a(f's_lshl_b32 s{sT0}, s{sT0}, 8')
    a(f's_add_u32 s{sGB}, s{sGB}, s{sT0}')
    a(f's_bfe_u32 s{sT1}, s{sTT}, 0x20001')
    a(f'v_lshlrev_b32 v4, 4, v{vT}')
    a(f's_cmp_eq_u32 s{sJ}, 2')
    a(f's_cbranch_scc1 L_k1_k2')
    a(f's_lshl_b32 s{sT1}, s{sT1}, 10')
    a(f's_lshl_b32 s{sT0}, s{sJ}, 9')
    a(f's_add_u32 s{sGB}, s{sGB}, s{sT1}')
    a(f's_add_u32 s{sGB}, s{sGB}, s{sT0}')
    a(f'v_and_b32 v5, 1, v{vG}')
    a(f'v_lshl_add_u32 v4, v5, 3, v4')
    a('s_mov_b32 exec_lo, 0')
    a(f'buffer_store_dwordx2 {vr(P0,2)}, v4, {sr(SWS,4)}, s{sGB} offen')
    a(f's_branch L_k1_done')
    a.label('L_k1_k2')
    a(f's_lshl_b32 s{sT1}, s{sT1}, 2')
    a(f's_add_u32 s{sGB}, s{sGB}, s{sT1}')
    a(f's_add_u32 s{sGB}, s{sGB}, 4096')
    a('s_mov_b32 exec_lo, 0')
    a('s_mov_b32 exec_hi, 0xffff0000')
    a(f'buffer_store_dword v{P1}, v4, {sr(SWS,4)}, s{sGB} offen')
    a(f's_branch L_k1_done')
    a.label('L_k1_v')
    a(f's_and_b32 s{sT0}, s{sTT}, 7')
    a(f's_mul_i32 s{sT0}, s{sT0}, {VFR}')
    a(f's_add_u32 s{sGB}, s{sGB}, s{sT0}')
    a(f's_add_u32 s{sGB}, s{sGB}, 4608')
    a(f's_cmp_gt_u32 s{sJ}, 5')
    a(f's_cbranch_scc1 L_k1_c')
    a(f'v_bfe_u32 v4, v{vT}, 2, 1')
    a(f'v_mul_u32_u24 v4, 288, v4')
    a(f'v_and_b32 v5, 1, v{vG}')
    a(f'v_lshl_add_u32 v4, v5, 7, v4')
    a(f'v_and_b32 v5, 8, v{vT}')
    a(f'v_add_u32 v4, v4, v5')
    a(f'v_and_b32 v5, 3, v{vT}')
    a(f'v_lshl_add_u32 v4, v5, 1, v4')
    a('s_mov_b32 exec_lo, 0')
    a(f's_cmp_eq_u32 s{sJ}, 5')
    a(f's_cbranch_scc1 L_k1_v2')
    a(f's_sub_u32 s{sT0}, s{sJ}, 3')
    a(f's_lshl_b32 s{sT0}, s{sT0}, 6')
    a(f's_add_u32 s{sGB}, s{sGB}, s{sT0}')
    a(f'buffer_store_short v{P0}, v4, {sr(SWS,4)}, s{sGB} offen')
    a(f'buffer_store_short_d16_hi v{P0}, v4, {sr(SWS,4)}, s{sGB} offen offset:16')
    a(f'buffer_store_short v{P1}, v4, {sr(SWS,4)}, s{sGB} offen offset:32')
    a(f'buffer_store_short_d16_hi v{P1}, v4, {sr(SWS,4)}, s{sGB} offen offset:48')
    a(f's_branch L_k1_done')
    a.label('L_k1_v2')
    a('s_mov_b32 exec_hi, 0xffff0000')
    a(f'buffer_store_short v{P1}, v4, {sr(SWS,4)}, s{sGB} offen offset:128')
    a(f'buffer_store_short_d16_hi v{P1}, v4, {sr(SWS,4)}, s{sGB} offen offset:144')
    a(f's_branch L_k1_done')
    a.label('L_k1_c')
    a(f's_cmp_eq_u32 s{sJ}, 7')
    a(f's_cbranch_scc1 L_k1_done')
    a(f'v_cmp_gt_u32 vcc, 4, v{vL}')
    a(f'v_lshlrev_b32 v4, 2, v{vL}')
    a(f'v_mov_b32 v5, 0')
    a(f'v_cndmask_b32 v5, v5, v{ONES}, vcc')
    a('s_mov_b64 exec, 0xff')
    a(f'buffer_store_dword v5, v4, {sr(SWS,4)}, s{sGB} offen offset:576')
    a.label('L_k1_done')
    if 'xchk' in OPT:
        a('s_getreg_b32 s50, hwreg(HW_REG_XCC_ID)')
        a('s_and_b32 s50, s50, 15')
        a('s_mov_b64 exec, 1')
        a('v_mov_b32 v4, 0'); a('v_mov_b32 v5, s50')
        a('s_lshl_b32 s51, s2, 2'); a('s_add_u32 s51, s51, 0x7000000')
        a(f'buffer_store_dword v5, v4, {sr(SWS,4)}, s51 offen')
    end(a, name, 0, SWS)
    return dict(name=name, grid=256, block=256, lds=122880, vgpr=168, acc=168)

def k2(a):
    name = 'k2_kernel'
    begin(a, name, 256)
    SWS, SSRC = 4, 8
    a('s_load_dwordx2 s[4:5], s[0:1], 80')
    a('s_load_dwordx2 s[24:25], s[0:1], 32')
    a('s_load_dwordx4 s[20:23], s[0:1], 48')
    srd(a, SWS, 0x10000000)
    sTB, sJ, sW, sTT, sS, sT0, sT1, sG, sEV, sFIN = 30, 31, 32, 33, 34, 35, 36, 37, 38, 39
    tbj(a, sTB, sJ, sT0)
    vL = 1
    a(f'v_lshrrev_b32 v4, 6, v0')
    a(f'v_and_b32 v{vL}, 63, v0')
    a(f'v_readfirstlane_b32 s{sW}, v4')
    NG = 8 if 'w16' in OPT else 16
    if 'w16' in OPT: a(f's_and_b32 s{sW}, s{sW}, 7')
    vAK, vA2, vAV = 2, 3, 12
    a(f'v_lshlrev_b32 v{vAK}, 4, v{vL}')
    a(f's_lshl_b32 s{sT0}, s{sW}, 10')
    a(f's_add_u32 s{sT1}, s{sT0}, {hx(KVOFF)}')
    a(f's_mov_b32 m0, s{sT0}')
    a('s_waitcnt lgkmcnt(0)')
    def dma(n):
        a(f'buffer_load_dwordx4 v{vAK}, {sr(SWS,4)}, s{sT1} offen lds')
        if n < 18:
            a(f's_add_u32 m0, m0, 8192')
            a(f's_add_u32 s{sT1}, s{sT1}, 8192')
    dma(0); dma(1)
    S0, S1, O, P, K16, K2, V0, V1, Q, QA, QB = 16, 32, 48, 64, 72, 76, 80, 84, 88, 92, 94
    vT, vHH, vHL = 5, 6, 7
    a(f'v_and_b32 v{vT}, 15, v{vL}')
    a(f'v_bfe_u32 v{vHH}, v{vL}, 4, 1')
    a(f'v_lshrrev_b32 v{vHL}, 5, v{vL}')
    a(f'v_mul_u32_u24 v8, 1152, v{vT}')
    a(f'v_mul_u32_u24 v9, 36, v{vHH}')
    a(f'v_add_u32 v8, v8, v9')
    a(f'v_lshl_add_u32 v8, v{vHL}, 4, v8')
    a(f's_and_b32 s{sTT}, s{sW}, 3')
    a(f's_lshl_b32 s{sTB}, s{sTB}, 2')
    a(f's_add_u32 s{sTT}, s{sTT}, s{sTB}')
    a(f's_lshr_b32 s{sS}, s{sW}, 2')
    a(f's_lshl_b32 s{sT0}, s{sJ}, 1')
    a(f's_add_u32 s{sS}, s{sS}, s{sT0}')
    a(f's_mul_i32 s{sTT}, s{sTT}, 18432')
    a(f's_mul_i32 s{sT0}, s{sS}, 72')
    a(f's_add_u32 s{sT0}, s{sT0}, s{sTT}')
    if QOFF: a(f's_add_u32 s{sT0}, s{sT0}, {hx(QOFF)}')
    vQ2 = 13
    a(f'buffer_load_dwordx4 {vr(Q,4)}, v8, {sr(SWS,4)}, s{sT0} offen')
    a(f'buffer_load_dword v{vQ2}, v8, {sr(SWS,4)}, s{sT0} offen offset:32')
    for n in range(2, 19): dma(n)
    a(f'v_cmp_gt_u32 vcc, 32, v{vL}')
    a(f'v_add_u32 v8, 4096, v{vAK}')
    a(f'v_mov_b32 v9, {4608+576}')
    a(f'v_cndmask_b32 v{vA2}, v9, v8, vcc')
    a(f'v_and_b32 v8, 31, v{vL}')
    a(f'v_mul_u32_u24 v9, 18, v{vHL}')
    a(f'v_add_u32 v9, v9, v8')
    a(f'v_cmp_lt_u32 vcc, 17, v8')
    a(f'v_mov_b32 v10, 37')
    a(f'v_and_b32 v8, 27, v8')
    a(f'v_cndmask_b32 v9, v9, v10, vcc')
    a(f'v_cmp_eq_u32 vcc, 18, v8')
    a(f'v_mov_b32 v10, 36')
    a(f's_mov_b32 s{sEV}, 1')
    a(f's_mov_b32 s{sFIN}, 0')
    if 'noside' not in OPT: a(f'v_mov_b32 v137, {hx(OOB)}'); a(f'v_mov_b32 v138, {hx(OOB)}'); a('s_mov_b32 s47, 0')
    if 'prio' in OPT:
        a(f's_cmp_lt_u32 s{sW}, 4')
        a('s_cbranch_scc1 L_k2_np')
        a('s_setprio 1')
        a.label('L_k2_np')
    a(f'v_cndmask_b32 v9, v9, v10, vcc')
    a(f'v_lshlrev_b32 v{vAV}, 4, v9')
    a(f'v_cmp_gt_u32 vcc, 32, v{vL}')
    stamp(a)
    a(f's_waitcnt vmcnt(17)')
    a(f'v_cndmask_b32 v{vQ2}, 0, v{vQ2}, vcc')
    a(f'v_mov_b32 v{QA+1}, 0')
    a(f'v_mov_b32 v{QA}, v{vQ2}')
    a('s_barrier')
    a(f'ds_read_b128 {vr(K16,4)}, v{vAK}')
    a(f'ds_read_b128 {vr(K2,4)}, v{vA2}')
    a(f's_waitcnt lgkmcnt(0)')
    a(f'{MF32} {vr(S0,16)}, {vr(K16,4)}, {vr(Q,4)}, 0')
    a(f'{MF8} {vr(S0,16)}, {vr(K2,2)}, {vr(QA,2)}, {vr(S0,16)}')
    vM = 14
    a(f'v_max3_f32 v{vM}, v{S0}, v{S0+1}, v{S0+2}')
    for r in range(3, 15, 2): a(f'v_max3_f32 v{vM}, v{vM}, v{S0+r}, v{S0+r+1}')
    a(f'v_max_f32 v{vM}, v{vM}, v{S0+15}')
    a.label('L_k2_setm')
    a(f'v_mov_b32 v8, v{vM}')
    a(f'v_permlane32_swap_b32 v8, v{vM}')
    a(f'v_max_f32 v8, v8, v{vM}')
    a(f'v_mul_f32 v8, -1.0, v8')
    a(f'v_and_b32 v9, 0xffff0000, v8')
    a(f'v_sub_f32 v8, v8, v9')
    a(f'v_and_b32 v10, 0xffff0000, v8')
    a(f'v_sub_f32 v8, v8, v10')
    a(f'v_lshrrev_b32 v9, 16, v9')
    a(f'v_or_b32 v9, v9, v10')
    a(f'v_lshrrev_b32 v8, 16, v8')
    a(f'v_cmp_gt_u32 vcc, 32, v{vL}')
    a(f'ds_read_b128 {vr(V0,4)}, v{vAV} offset:4608')
    for r in range(16): a(f'v_mov_b32 v{O+r}, 0')
    a(f'v_cndmask_b32 v{QA}, v9, v{vQ2}, vcc')
    a(f'v_cndmask_b32 v{QA+1}, v8, v{O}, vcc')
    a(f'v_cndmask_b32 v{QB}, v9, v{O}, vcc')
    a(f'v_cndmask_b32 v{QB+1}, v8, v{vQ2}, vcc')
    for r in (S1+14, S1+15, P+4, P+5, P+6, V1, V1+1, V1+2, V1+3): a(f'v_mov_b32 v{r}, 0')
    a(f'{MF32} {vr(S0,16)}, {vr(K16,4)}, {vr(Q,4)}, 0')
    a(f'{MF8} {vr(S0,16)}, {vr(K2,2)}, {vr(QA,2)}, {vr(S0,16)}')
    a(f'ds_read_b128 {vr(K16,4)}, v{vAK} offset:1024')
    a(f's_mov_b32 s{sG}, 0')
    stamp(a)
    a(f's_waitcnt lgkmcnt(0)')
    a('s_nop 8')
    a.raw('.p2align 6')
    a.label('L_k2_loop')
    a0 = a
    def a(t):
        if 'nods' in OPT and t.startswith('ds_read'): return
        if 'nowt' in OPT and t.startswith('s_waitcnt'): return
        if 'nomf8' in OPT and t.startswith(MF8): return
        if 'nopv' in OPT and t.startswith(f'{MF32} {vr(O,16)}'): return
        if 'noqk' in OPT and t.startswith(MF32) and not t.startswith(f'{MF32} {vr(O,16)}'): return
        if 'nocvt' in OPT and t.startswith('v_cvt'): return
        if t.startswith('v_cvt'):
            o = t.replace(',', '').split()
            if 'csdwa' in OPT: t = f'v_mov_b32_sdwa {o[1]}, {o[2]} dst_sel:WORD_0 dst_unused:UNUSED_PRESERVE src0_sel:WORD_1'
            if 'cmov' in OPT: t = f'v_mov_b32 {o[1]}, {o[2]}'
            if 'cor' in OPT: t = f'v_or_b32 {o[1]}, {o[2]}, {o[3]}'
            if 'cbfi' in OPT: t = f'v_bfi_b32 {o[1]}, {o[2]}, {o[3]}, {o[1]}'
            if 'cadd' in OPT: t = f'v_add_f32 {o[1]}, {o[2]}, {o[3]}'
            if 'corsdwa' in OPT: t = f'v_or_b32_sdwa {o[1]}, {o[2]}, {o[3]} dst_sel:DWORD dst_unused:UNUSED_PAD src0_sel:WORD_1 src1_sel:DWORD'
            if 'calign' in OPT: t = f'v_alignbit_b32 {o[1]}, {o[2]}, {o[3]}, 16'
            if 'cpkmov' in OPT: t = f'v_pack_b32_f16 {o[1]}, {o[2]}, {o[3]} op_sel:[1,1,0]'
        if 'noexp' in OPT and t.startswith('v_exp'): return
        if t.startswith(('v_mfma', 'ds_read')):
            import re
            def f(m):
                lo = int(m.group(1))
                if 'agab' in OPT and lo >= 72: return 'a' + m.group(0)[1:]
                if 'ago' in OPT and lo == O: return 'a' + m.group(0)[1:]
                return m.group(0)
            t = re.sub(r'v\[(\d+):(\d+)\]', f, t)
        a0(t)
    for T in range(4):
        S, Sn = (S0, S1) if T % 2 == 0 else (S1, S0)
        e = lambda r: f'v_exp_f32{"_e64" if "e64" in OPT else ""} v{S+r}, v{S+r}'
        c = lambda k: f'v_cvt_pk_bf16_f32 v{P+k}, v{S+2*k}, v{S+2*k+1}'
        st = [e(0), f'v_cvt_pk_bf16_f32 v{P+7}, v{Sn+14}, v{Sn+15}']
        for k in range(7): st += [e(2*k+1), e(2*k+2), c(k)]
        st.append(e(15))
        if 'lag' in OPT:
            cn = lambda k: f'v_cvt_pk_bf16_f32 v{P+k}, v{Sn+2*k}, v{Sn+2*k+1}'
            st = [e(0), cn(6), e(1), e(2), cn(7)]
            for k in range(6): st += [e(2*k+3), e(2*k+4), c(k)]
            st.append(e(15))
        if 'grp' in OPT:
            cn = lambda k: f'v_cvt_pk_bf16_f32 v{P+k}, v{Sn+2*k}, v{Sn+2*k+1}'
            st = [e(0), cn(6), cn(7), e(1), e(2), e(3), e(4), c(0), c(1), e(5), e(6), e(7), e(8), c(2), c(3), e(9), e(10), e(11), e(12), c(4), c(5), e(13), e(14), e(15)]
        if 'oop' in OPT:
            st = [x.replace('v_exp_f32 v', 'v_exp_f32 v1', 1) if x.startswith('v_exp') and len(x.split()[1]) == 4 and int(x.split()[1][1:-1]) < 44 else x for x in st]
        Tn = (T + 1) % 4
        if 'pp4' in OPT and T in (0, 3): a(f's_setprio {1 if T == 0 else 0}')
        if 'pp2' in OPT and T in (0, 2): a(f's_setprio {1 if T == 0 else 0}')
        for idx, op in enumerate(st):
            a(op)
            if idx == 1:
                a(f's_waitcnt lgkmcnt({3 if T == 3 else 2})')
                a(f'{MF32} {vr(Sn,16)}, {vr(K16,4)}, {vr(Q,4)}, 0')
                a(f'ds_read_b128 {vr(K16,4)}, v{vAK} offset:{(T+2)*1024 if T < 2 else GRP+(T-2)*1024}')
            if idx == 6:
                a(f's_waitcnt lgkmcnt({3 if T == 3 else 2})')
                a(f'{MF32} {vr(O,16)}, {vr(V1,4)}, {vr(P+4,4)}, {vr(O,16)}')
                a(f'ds_read_b128 {vr(V1,4)}, v{vAV} offset:{4608+(2*T+1)*VFR}')
            if idx == 11:
                if T == 3: a(f's_waitcnt lgkmcnt(3)')
                a(f'{MF8} {vr(Sn,16)}, {vr(K2+2*(Tn//2),2)}, {vr(QA if Tn % 2 == 0 else QB,2)}, {vr(Sn,16)}')
                if T == 2: a(f'ds_read_b128 {vr(K2,4)}, v{vA2} offset:{GRP}')
            if idx == 17:
                a(f's_waitcnt lgkmcnt({3 if T == 2 else 2})')
                a(f'{MF32} {vr(O,16)}, {vr(V0,4)}, {vr(P,4)}, {vr(O,16)}')
                a(f'ds_read_b128 {vr(V0,4)}, v{vAV} offset:{4608+(2*T+2)*VFR if T < 3 else GRP+4608}')
                if T == 3:
                    a(f's_add_u32 s{sG}, s{sG}, 1')
                    a(f'v_add_u32 v{vAK}, {GRP}, v{vAK}')
                    a(f'v_add_u32 v{vA2}, {GRP}, v{vA2}')
                    a(f'v_add_u32 v{vAV}, {GRP}, v{vAV}')
                    a(f's_cmp_lg_u32 s{sG}, s{sEV}')
    a = a0
    a(f's_cbranch_scc1 L_k2_loop')
    a(f's_cmp_eq_u32 s{sG}, {NG}')
    a(f's_cbranch_scc1 L_k2_fin')
    a(f's_cmp_eq_u32 s{sG}, 1')
    a(f's_cbranch_scc0 L_k2_ev3')
    stamp(a)
    a(f's_waitcnt vmcnt(13)')
    a('s_barrier')
    stamp(a)
    a(f's_mov_b32 s{sEV}, 3')
    a('s_branch L_k2_loop')
    a.label('L_k2_ev3')
    a(f's_cmp_eq_u32 s{sG}, 3')
    a(f's_cbranch_scc0 L_k2_ev8')
    stamp(a)
    a(f's_waitcnt vmcnt(0)')
    a('s_barrier')
    stamp(a)
    sV, sX8, sA, sB, sSO, sIA, sIB, sDO = 40, 41, 42, 43, 44, 45, 46, 47
    R, TR, vSO, vD0, vD1 = 96, 128, 136, 137, 138
    t0, t1, t2, t3 = 140, 141, 142, 143
    a(f's_mov_b32 s{sEV}, {NG}')
    if 'noside' in OPT:
        a('s_branch L_k2_loop')
        a.label('L_k2_ev8')
        a('s_branch L_k2_loop')
        mark = (len(a.out), len(a.seq), list(a.branches), dict(a.labels))
    a(f's_lshl_b32 s{sV}, s{sW}, 5')
    a(f's_lshr_b32 s{sT0}, s2, 3')
    a(f's_add_u32 s{sV}, s{sV}, s{sT0}')
    a(f's_and_b32 s{sX8}, s2, 7')
    a(f's_mov_b32 s11, 0x00020000')
    a(f'v_and_b32 v{t0}, 7, v{vL}')
    a(f'v_bfe_u32 v{t1}, v{vL}, 3, 1')
    a(f'v_lshrrev_b32 v{t2}, 4, v{vL}')
    a(f's_cmp_ge_u32 s{sV}, 162')
    a(f's_cbranch_scc1 L_k2_wo')
    a(f's_cmp_ge_u32 s{sV}, 81')
    a(f's_cselect_b32 s8, s22, s20')
    a(f's_cselect_b32 s9, s23, s21')
    a(f's_mov_b32 s10, {576*4608*2}')
    a(f's_cselect_b32 s{sT0}, 81, 0')
    a(f's_cselect_b32 s{sIA}, 1152, 9216') if False else None
    a(f's_movk_i32 s{sIB}, 0x2400')
    a(f's_cselect_b32 s{sIA}, 1152, s{sIB}')
    a(f's_mov_b32 s{sIB}, {hx(W1F)}')
    a(f's_cselect_b32 s{sDO}, {hx(W2F)}, s{sIB}')
    a(f's_movk_i32 s{sIB}, 1152')
    a(f's_cselect_b32 s{sT1}, {576*1152}, s{sIB}')
    a(f's_sub_u32 s{sV}, s{sV}, s{sT0}')
    a(f's_mul_i32 s{sA}, s{sV}, 57')
    a(f's_lshr_b32 s{sA}, s{sA}, 9')
    a(f's_mul_i32 s{sT0}, s{sA}, 9')
    a(f's_sub_u32 s{sB}, s{sV}, s{sT0}')
    a(f's_mul_i32 s{sSO}, s{sX8}, s{sT1}')
    a(f's_lshl_b32 s{sT0}, s{sA}, 7')
    a(f's_add_u32 s{sSO}, s{sSO}, s{sT0}')
    a(f's_mul_i32 s{sT0}, s{sB}, s{sIA}')
    a(f's_lshl_b32 s{sT0}, s{sT0}, 6')
    a(f's_add_u32 s{sSO}, s{sSO}, s{sT0}')
    a(f's_mov_b32 s{sIB}, s{sIA}')
    a(f's_mul_i32 s{sT0}, s{sX8}, 9')
    a(f's_add_u32 s{sT0}, s{sT0}, s{sA}')
    a(f's_mul_i32 s{sT0}, s{sT0}, 36')
    a(f's_add_u32 s{sT0}, s{sT0}, s{sB}')
    a(f's_lshl_b32 s{sT0}, s{sT0}, 11')
    a(f's_add_u32 s{sDO}, s{sDO}, s{sT0}')
    a(f'v_lshl_add_u32 v{t3}, v{t1}, 2, v{t2}')
    a(f'v_lshlrev_b32 v{t3}, 3, v{t3}')
    a(f'v_mul_u32_u24 v{vSO}, s{sIA}, v{t3}')
    a(f'v_lshl_add_u32 v{vSO}, v{t0}, 4, v{vSO}')
    a(f'v_lshrrev_b32 v{t3}, 2, v{t0}')
    a(f'v_mul_u32_u24 v{t3}, 36, v{t3}')
    a(f'v_add_u32 v{t3}, v{t3}, v{t1}')
    a(f'v_lshlrev_b32 v{vD0}, 10, v{t3}')
    a(f'v_lshl_add_u32 v{vD0}, v{t2}, 8, v{vD0}')
    a(f'v_and_b32 v{t3}, 3, v{t0}')
    a(f'v_lshl_add_u32 v{vD0}, v{t3}, 6, v{vD0}')
    a(f'v_add_u32 v{vD1}, 18432, v{vD0}')
    a(f's_branch L_k2_sload')
    a.label('L_k2_wo')
    a(f's_sub_u32 s{sV}, s{sV}, 162')
    a(f's_lshl_b32 s{sV}, s{sV}, 3')
    a(f's_add_u32 s{sV}, s{sV}, s{sX8}')
    a(f's_cmp_ge_u32 s{sV}, 81')
    a(f's_cbranch_scc1 L_k2_loop')
    a(f's_mov_b32 s8, s24')
    a(f's_mov_b32 s9, s25')
    a(f's_mov_b32 s10, {576*1152}')
    a(f's_mul_i32 s{sA}, s{sV}, 57')
    a(f's_lshr_b32 s{sA}, s{sA}, 9')
    a(f's_mul_i32 s{sT0}, s{sA}, 9')
    a(f's_sub_u32 s{sB}, s{sV}, s{sT0}')
    a(f's_movk_i32 s{sIA}, 1152')
    a(f's_mul_i32 s{sSO}, s{sA}, {72*1152}')
    a(f's_cmp_eq_u32 s{sA}, 8')
    a(f's_cselect_b32 s{sIB}, {17*1152}, s{sIA}')
    a(f's_cselect_b32 s{sSO}, {16*1152}, s{sSO}')
    a(f's_cselect_b32 s48, 288, 36') if False else None
    a(f's_movk_i32 s48, 288')
    a(f's_cselect_b32 s48, s48, 36')
    a(f's_movk_i32 s49, 144')
    a(f's_cselect_b32 s49, s49, 18')
    a(f's_movk_i32 s50, 72')
    a(f's_cselect_b32 s50, s50, 8')
    a(f's_lshl_b32 s{sT0}, s{sB}, 7')
    a(f's_add_u32 s{sSO}, s{sSO}, s{sT0}')
    a(f'v_mul_u32_u24 v{vSO}, s48, v{t1}')
    a(f'v_lshrrev_b32 v{t3}, 1, v{t2}')
    a(f'v_mul_u32_u24 v{t3}, s49, v{t3}')
    a(f'v_add_u32 v{vSO}, v{vSO}, v{t3}')
    a(f'v_and_b32 v{t3}, 1, v{t2}')
    a(f'v_mul_u32_u24 v{t3}, s50, v{t3}')
    a(f'v_add_u32 v{vSO}, v{vSO}, v{t3}')
    a(f'v_mul_u32_u24 v{vSO}, 1152, v{vSO}')
    a(f'v_lshl_add_u32 v{vSO}, v{t0}, 4, v{vSO}')
    a(f's_mul_i32 s{sDO}, s{sA}, {2*4608}')
    a(f's_add_u32 s{sDO}, s{sDO}, {hx(WOF)}')
    a(f's_lshl_b32 s{sT0}, s{sB}, 3')
    a(f'v_add_u32 v{t0}, s{sT0}, v{t0}')
    a(f'v_mul_u32_u24 v{t3}, 57, v{t0}')
    a(f'v_lshrrev_b32 v{t3}, 9, v{t3}')
    a(f'v_mul_u32_u24 v{vD1}, 9, v{t3}')
    a(f'v_sub_u32 v{t0}, v{t0}, v{vD1}')
    a(f'v_mul_u32_u24 v{t3}, {WOSL}, v{t3}')
    a(f'v_mul_u32_u24 v{t1}, 4608, v{t1}')
    a(f'v_add_u32 v{t3}, v{t3}, v{t1}')
    a(f'v_lshrrev_b32 v{t1}, 2, v{t0}')
    a(f'v_lshl_add_u32 v{t3}, v{t1}, 11, v{t3}')
    a(f'v_and_b32 v{t1}, 3, v{t0}')
    a(f'v_lshl_add_u32 v{t3}, v{t1}, 6, v{t3}')
    a(f'v_cmp_eq_u32 vcc, 8, v{t0}')
    a(f'v_lshl_add_u32 v{vD0}, v{t2}, 8, v{t3}')
    a(f'v_lshl_add_u32 v{t1}, v{t2}, 7, v{t3}')
    a(f'v_mov_b32 v{t0}, 1024')
    a(f'v_cndmask_b32 v{vD0}, v{vD0}, v{t1}, vcc')
    a(f'v_cndmask_b32 v{t0}, v{t0}, 64, vcc') if False else None
    a(f'v_mov_b32 v{t2}, 64')
    a(f'v_cndmask_b32 v{t0}, v{t0}, v{t2}, vcc')
    a(f'v_add_u32 v{vD1}, v{vD0}, v{t0}')
    a.label('L_k2_sload')
    for e in range(8):
        a(f'buffer_load_dwordx4 {vr(R+4*e,4)}, v{vSO}, {sr(SSRC,4)}, s{sSO} offen')
        if e < 7: a(f's_add_u32 s{sSO}, s{sSO}, s{sIA if e % 2 == 0 else sIB}')
    a(f's_mov_b32 s{sEV}, 8')
    a('s_branch L_k2_loop')
    a.label('L_k2_ev8')
    a(f's_mov_b32 s{sIA}, 0x05040100')
    a(f's_mov_b32 s{sIB}, 0x07060302')
    stamp(a)
    a(f's_waitcnt vmcnt(0)')
    stamp(a)
    for e in range(8):
        t = TR + 4 * (e % 2)
        for q in range(4):
            a(f'v_perm_b32 v{t+q}, v{R+4*(2*q+1)+e//2}, v{R+4*(2*q)+e//2}, s{sIA if e % 2 == 0 else sIB}')
        a(f'buffer_store_dwordx4 {vr(t,4)}, v{vD0 if e < 4 else vD1}, {sr(SWS,4)}, s{sDO} offen offset:{(e&3)*16}')
    a(f's_mov_b32 s{sEV}, 16')
    stamp(a)
    a('s_branch L_k2_loop')
    if 'noside' in OPT:
        del a.out[mark[0]:]; del a.seq[mark[1]:]; a.branches = mark[2]; a.labels = mark[3]; a.hist = []
    a.label('L_k2_fin')
    stamp(a)
    a(f'v_cvt_pk_bf16_f32 v{P+7}, v{S1+14}, v{S1+15}')
    a(f's_waitcnt lgkmcnt(0)')
    a(f'{MF32} {vr(O,16)}, {vr(V1,4)}, {vr(P+4,4)}, {vr(O,16)}')
    a(f'v_lshl_add_u32 v8, v{vHH}, 1, v{vHL}')
    a(f'v_lshl_add_u32 v8, v8, 4, v{vT}')
    a(f'v_lshlrev_b32 v8, 4, v8')
    a(f'v_lshlrev_b32 v9, 4, v{vT}')
    a(f'v_lshl_add_u32 v9, v{vHH}, 2, v9')
    a(f's_lshl_b32 s{sT0}, s{sS}, 10')
    a(f's_add_u32 s{sT0}, s{sT0}, s{sTT}')
    a(f's_add_u32 s{sT0}, s{sT0}, {hx(OOFF)}')
    a(f's_lshr_b32 s{sT1}, s{sS}, 1')
    a(f's_lshl_b32 s{sT1}, s{sT1}, 8')
    a(f's_and_b32 s40, s{sS}, 1')
    a(f's_lshl_b32 s40, s40, 3')
    a(f's_add_u32 s{sT1}, s{sT1}, s40')
    a(f's_add_u32 s{sT1}, s{sT1}, s{sTT}')
    a(f's_add_u32 s{sT1}, s{sT1}, {hx(OOFF + 16*1024)}')
    a(f'v_max3_f32 v10, |v{O}|, |v{O+1}|, |v{O+2}|')
    for r in range(3, 10, 2): a(f'v_max3_f32 v10, v10, |v{O+r}|, |v{O+min(r+1,9)}|')
    a(f'v_add_f32 v11, v{O}, v{O+1}')
    for r in range(2, 10): a(f'v_add_f32 v11, v11, v{O+r}')
    a(f'v_rcp_f32 v15, v{O+10}')
    a(f'v_mov_b32 v{vM}, {hx(f2u(2.0**40))}')
    a(f'v_cmp_nle_f32 vcc, v{O+10}, v{vM}')
    a(f'v_mov_b32 v{vM}, 0x7f000000')
    a(f'v_cmp_nle_f32 s[40:41], v10, v{vM}')
    a(f'v_cmp_u_f32 s[42:43], v11, v11')
    a(f's_or_b64 vcc, vcc, s[40:41]')
    a(f's_or_b64 vcc, vcc, s[42:43]')
    a(f's_cmp_eq_u64 vcc, 0')
    if 'nofb' not in OPT: a(f's_cbranch_scc0 L_k2_fb')
    a.label('L_k2_out')
    for r in range(10): a(f'v_mul_f32 v{O+r}, v{O+r}, v15')
    for k in range(5): a(f'v_cvt_pk_bf16_f32 v{P+k}, v{O+2*k}, v{O+2*k+1}')
    a(f'buffer_store_dwordx4 {vr(P,4)}, v8, {sr(SWS,4)}, s{sT0} offen')
    a('s_mov_b32 exec_hi, 0')
    a(f'buffer_store_dword v{P+4}, v9, {sr(SWS,4)}, s{sT1} offen')
    a('s_branch L_k2_done')
    a.label('L_k2_fb')
    a(f's_cmp_eq_u32 s{sFIN}, 1')
    a(f's_cbranch_scc1 L_k2_out')
    a(f's_mov_b32 s{sFIN}, 1')
    for r in (vAK, vA2, vAV): a(f'v_subrev_u32 v{r}, {16*GRP}, v{r}')
    a(f'v_mov_b32 v{QA}, v{vQ2}'); a(f'v_mov_b32 v{QA+1}, 0')
    a(f'v_mov_b32 v{QB}, 0'); a(f'v_mov_b32 v{QB+1}, v{vQ2}')
    a(f'v_mov_b32 v{vM}, 0xff7fffff')
    a(f'v_mov_b32 v8, v{vAK}'); a(f'v_mov_b32 v9, v{vA2}')
    a(f's_mov_b32 s{sG}, 0')
    a.label('L_k2_fbl')
    a(f'ds_read_b128 {vr(K2,4)}, v9')
    for T in range(4):
        a(f'ds_read_b128 {vr(K16,4)}, v8 offset:{T*1024}')
        a(f's_waitcnt lgkmcnt(0)')
        a(f'{MF32} {vr(S0,16)}, {vr(K16,4)}, {vr(Q,4)}, 0')
        a(f'{MF8} {vr(S0,16)}, {vr(K2+2*(T//2),2)}, {vr(QA if T % 2 == 0 else QB,2)}, {vr(S0,16)}')
        for r in range(0, 16, 2): a(f'v_max3_f32 v{vM}, v{vM}, v{S0+r}, v{S0+r+1}')
    a(f'v_add_u32 v8, {GRP}, v8'); a(f'v_add_u32 v9, {GRP}, v9')
    a(f's_add_u32 s{sG}, s{sG}, 1')
    a(f's_cmp_lg_u32 s{sG}, 16')
    a(f's_cbranch_scc1 L_k2_fbl')
    a(f'ds_read_b128 {vr(K16,4)}, v{vAK}')
    a(f'ds_read_b128 {vr(K2,4)}, v{vA2}')
    a(f's_mov_b32 s{sEV}, 16')
    a(f's_waitcnt lgkmcnt(0)')
    a('s_branch L_k2_setm')
    a.label('L_k2_done')
    end(a, name, 1, SWS)
    if 'w16' in OPT: return dict(name=name, grid=256, block=1024, lds=163840, vgpr=128, acc=128)
    if 'agab' in OPT or 'ago' in OPT: return dict(name=name, grid=256, block=512, lds=163840, vgpr=256, acc=144)
    return dict(name=name, grid=256, block=512, lds=163840, vgpr=144, acc=144)

def k3(a):
    name = 'k3_kernel'
    begin(a, name, 256)
    SX, SWS = 4, 8
    a('s_load_dwordx2 s[4:5], s[0:1], 0')
    a('s_load_dwordx2 s[8:9], s[0:1], 80')
    srd(a, SX, ACT); srd(a, SWS, 0x10000000)
    sTB, sJ, sW, sTT, sT0, sT1, sO = 30, 31, 32, 33, 34, 35, 36
    tbj(a, sTB, sJ, sT0)
    vL, vG, vT, vA, vA4 = 1, 2, 3, 10, 11
    a(f'v_lshrrev_b32 v4, 6, v0')
    a(f'v_and_b32 v{vL}, 63, v0')
    a(f'v_readfirstlane_b32 s{sW}, v4')
    a(f'v_lshlrev_b32 v{vA}, 4, v{vL}')
    a(f's_lshl_b32 s{sTT}, s{sTB}, 2')
    a(f's_add_u32 s{sTT}, s{sTT}, s{sW}')
    a(f's_mul_i32 s{sTT}, s{sTT}, 18432')
    a(f's_add_u32 s{sO}, s{sTT}, {hx(OOFF)}')
    a(f's_lshl_b32 s{sT0}, s{sW}, 10')
    a(f's_mov_b32 m0, s{sT0}')
    a(f's_mul_i32 s{sT1}, s{sJ}, {WOSL}')
    a(f's_add_u32 s{sT1}, s{sT1}, s{sT0}')
    a(f's_add_u32 s{sT1}, s{sT1}, {hx(WOF)}')
    X, WR, ACC, RES = 32, 104, 144, 164
    a('s_waitcnt lgkmcnt(0)')
    order = []
    nd = 0
    for s in range(18):
        a(f'buffer_load_dwordx4 {vr(X+4*s,4)}, v{vA}, {sr(SWS,4)}, s{sO} offen offset:{(s%4)*1024}')
        order.append(('x', s))
        if s % 4 == 3: a(f's_add_u32 s{sO}, s{sO}, 4096')
        while nd < 21 and nd * 4096 < (s + 1) * 4608:
            a(f'buffer_load_dwordx4 v{vA}, {sr(SWS,4)}, s{sT1} offen lds')
            order.append(('w', nd))
            nd += 1
            if nd < 21:
                a(f's_add_u32 m0, m0, 4096')
                a(f's_add_u32 s{sT1}, s{sT1}, 4096')
    assert nd == 21
    a(f'v_lshrrev_b32 v{vG}, 4, v{vL}')
    a(f'v_and_b32 v{vT}, 15, v{vL}')
    a(f'v_mul_u32_u24 v4, 1152, v{vT}')
    a(f'v_lshl_add_u32 v5, v{vG}, 3, v4')
    a(f'v_lshl_add_u32 v4, v{vG}, 4, v4')
    a(f's_mul_i32 s{sT0}, s{sJ}, 144')
    a(f's_add_u32 s{sT0}, s{sT0}, s{sTT}')
    a(f'buffer_load_dwordx4 {vr(RES,4)}, v4, {sr(SX,4)}, s{sT0} offen')
    a(f'buffer_load_dwordx4 {vr(RES+4,4)}, v4, {sr(SX,4)}, s{sT0} offen offset:64')
    a(f'buffer_load_dwordx2 {vr(RES+8,2)}, v5, {sr(SX,4)}, s{sT0} offen offset:128')
    order += [('r', 0)] * 3
    a(f'v_and_b32 v4, 7, v{vL}')
    a(f'v_lshl_add_u32 v4, v{vG}, 3, v4')
    a(f'v_lshlrev_b32 v{vA4}, 4, v4')
    vB, vB4 = 12, 13
    a(f'v_add_u32 v{vB}, {9*4608}, v{vA}')
    a(f'v_add_u32 v{vB4}, {9*4608}, v{vA4}')
    def stage_wait(slast):
        idx = max(i for i, o in enumerate(order) if (o[0] == 'x' and o[1] <= slast) or (o[0] == 'w' and o[1] * 4096 < (slast + 1) * 4608))
        stamp(a)
        a(f's_waitcnt vmcnt({len(order) - 1 - idx})')
        a('s_barrier')
        stamp(a)
    D = 10
    def rd(f):
        s, ct = divmod(f, 5)
        if f == 0: stage_wait(8)
        if f == 45: stage_wait(17)
        ad = (vA if ct < 4 else vA4) if s < 9 else (vB if ct < 4 else vB4)
        a(f'ds_read_b128 {vr(WR+4*(f%D),4)}, v{ad} offset:{(s%9)*4608+ct*1024}')
    for f in range(D): rd(f)
    for f in range(90):
        s, ct = divmod(f, 5)
        a(f's_waitcnt lgkmcnt({min(D - 1, 89 - f)})')
        a(f'{MF16} {vr(ACC+4*ct,4)}, {vr(WR+4*(f%D),4)}, {vr(X+4*s,4)}, {"0" if s == 0 else vr(ACC+4*ct,4)}')
        if f + D < 90: rd(f + D)
    stamp(a)
    a(f's_mul_i32 s{sT0}, s{sJ}, {9*256}')
    a(f's_add_u32 s{sT0}, s{sT0}, s{sTT}')
    a(f's_add_u32 s{sT0}, s{sT0}, {hx(HOFF)}')
    a(f'v_lshlrev_b32 v4, 4, v{vT}')
    a(f'v_lshl_add_u32 v4, v{vG}, 3, v4')
    a('s_waitcnt vmcnt(0)')
    for k in range(10):
        a(f'v_lshlrev_b32 v6, 16, v{RES+k}')
        a(f'v_and_b32 v7, 0xffff0000, v{RES+k}')
        a(f'v_add_f32 v6, v6, v{ACC+2*k}')
        a(f'v_add_f32 v7, v7, v{ACC+2*k+1}')
        a(f'v_cvt_pk_bf16_f32 v{RES+k}, v6, v7')
        if k in (3, 7):
            a(f'buffer_store_dwordx4 {vr(RES+k-3,4)}, v{vA}, {sr(SWS,4)}, s{sT0} offen offset:{(k//4)*1024}')
    a('s_mov_b32 exec_hi, 0')
    a(f'buffer_store_dwordx2 {vr(RES+8,2)}, v4, {sr(SWS,4)}, s{sT0} offen offset:2048')
    end(a, name, 2, SWS)
    return dict(name=name, grid=256, block=256, lds=86016, vgpr=176, acc=176)

def k4(a):
    name = 'k4_kernel'
    begin(a, name, 256)
    SWS = 4
    a('s_load_dwordx2 s[4:5], s[0:1], 80')
    srd(a, SWS, 0x10000000)
    sTB, sJ, sW, sT0, sT1, sH, sP1, sP2, sSG, sW2, sIT, sLO, sHI, sST, sSS = 30, 31, 32, 33, 34, 35, 36, 37, 38, 39, 40, 41, 42, 43, 44
    a(f's_and_b32 s{sJ}, s2, 7')
    a(f's_lshr_b32 s{sTB}, s2, 3')
    vL = 1
    VA = 2
    a(f'v_lshrrev_b32 v8, 6, v0')
    a(f'v_and_b32 v{vL}, 63, v0')
    a(f'v_readfirstlane_b32 s{sW}, v8')
    a(f'v_lshlrev_b32 v{VA}, 4, v{vL}')
    for k in range(1, 5): a(f'v_add_u32 v{VA+k}, {4096*k}, v{VA}')
    XB = 48
    RV = 120
    ACC = 224
    def Breg(b): return vr(4*b, 4, 'a') if b < 54 else vr(XB + 4*(b-54), 4)
    def Rreg(q): return vr(216 + 4*q, 4, 'a') if q < 10 else vr(RV + 4*(q-10), 4)
    C1, PK, TMP, vHW, vHS = 8, 12, 28, 44, 45
    a(f's_lshl_b32 s{sT0}, s{sTB}, 2')
    a(f's_add_u32 s{sT0}, s{sT0}, s{sW}')
    a(f's_mul_i32 s{sH}, s{sT0}, 18432')
    a(f's_add_u32 s{sH}, s{sH}, {hx(HOFF)}')
    a(f's_and_b32 s{sT1}, s{sW}, 1')
    a(f's_mul_i32 s{sT0}, s{sW}, 9')
    a(f's_add_u32 s{sT0}, s{sT0}, s{sT1}')
    a(f's_cmp_eq_u32 s{sT1}, 0')
    a(f's_cselect_b32 s{sSG}, 8, -1')
    a(f's_add_u32 s{sSG}, s{sSG}, s{sT0}')
    sC0, sCS = 45, 46
    a(f's_lshr_b32 s{sC0}, s{sT0}, 1')
    a(f's_lshr_b32 s{sCS}, s{sSG}, 1')
    a(f's_mul_i32 s{sP1}, s{sJ}, 36')
    a(f's_add_u32 s{sSG}, s{sSG}, s{sP1}')
    a(f's_add_u32 s{sP1}, s{sP1}, s{sT0}')
    a(f's_mul_i32 s{sP1}, s{sP1}, 18432')
    a(f's_mul_i32 s{sSG}, s{sSG}, 18432')
    a(f's_add_u32 s{sW2}, s{sP1}, {hx(W2F)}')
    a(f's_add_u32 s{sP1}, s{sP1}, {hx(W1F)}')
    a(f's_add_u32 s{sSG}, s{sSG}, {hx(W1F)}')
    a(f's_add_u32 s{sP2}, s{sP1}, 18432')
    a('s_waitcnt lgkmcnt(0)')
    def ld(dst, s, so):
        return f'buffer_load_dwordx4 {dst}, v{VA + s//4}, {sr(SWS,4)}, s{so} offen offset:{(s%4)*1024}'
    for s in range(18): a(ld(vr(XB+4*s,4), s, sH))
    for s in range(18): a(ld(Rreg(s), s, sP1))
    for s in range(18): a(ld(Rreg(18+s), s, sP2))
    a(f's_add_u32 s{sP2}, s{sP2}, 18432')
    a(f's_mov_b32 s{sLO}, 0x00003f80'); a(f's_mov_b32 s{sHI}, 0x3f800000')
    HB, CB = 73728, 147456
    a(f's_lshl_b32 s{sT0}, s{sW}, 10')
    a(f'v_add_u32 v{vHW}, s{sT0}, v{VA}')
    a(f'v_add_u32 v{vHS}, 36864, v{vHW}')
    def post(s):
        a(f'ds_write_b128 v{vHW if s < 9 else vHS}, {vr(XB+4*s,4)} offset:{(s%9)*4096}')
    stamp(a)
    ln_center(a, XB, ACC, ACC+4, ACC+8, TMP, sLO, sHI, lambda s: (a(f's_waitcnt vmcnt({36 + 17 - s})'), stamp(a) if s == 17 else None), post)
    stamp(a)
    ln_rstd(a, ACC+8, vL, TMP, 48)
    a(f'v_and_b32 v{TMP}, 15, v{vL}')
    a(f'v_lshlrev_b32 v{TMP}, 2, v{TMP}')
    a(f'v_add_u32 v{TMP}, {CB}, v{TMP}')
    a(f's_lshl_b32 s{sT0}, s{sW}, 6')
    a(f'v_mul_f32 v{ACC+8}, {hx(f2u(-LOG2E))}, v{ACC+8}')
    a(f'v_add_u32 v{TMP+1}, s{sT0}, v{TMP}')
    a(f'ds_write_b32 v{TMP+1}, v{ACC+8}')
    a(f's_lshl_b32 s{sT0}, s{sC0}, 12')
    a(f's_add_u32 s{sT0}, s{sT0}, {HB}')
    a(f'v_add_u32 v{vHW}, s{sT0}, v{VA}')
    a(f's_lshl_b32 s{sT0}, s{sCS}, 12')
    a(f's_lshl_b32 s{sT1}, s{sT1}, 3')
    a(f's_add_u32 s{sT0}, s{sT0}, s{sT1}')
    a(f's_add_u32 s{sT0}, s{sT0}, {HB}')
    a(f'v_add_u32 v{vHS}, s{sT0}, v{VA}')
    a(f's_mul_i32 s{sST}, s{sJ}, {ACT}')
    a(f's_mul_i32 s{sT0}, s{sTB}, {4*18432}')
    a(f's_add_u32 s{sST}, s{sST}, s{sT0}')
    a(f's_add_u32 s{sST}, s{sST}, {hx(PART)}')
    a(f's_lshl_b32 s{sT0}, s{sCS}, 10')
    a(f's_add_u32 s{sSS}, s{sST}, s{sT0}')
    a(f's_add_u32 s{sSS}, s{sSS}, s{sT1}')
    a(f's_lshl_b32 s{sT0}, s{sC0}, 10')
    a(f's_add_u32 s{sST}, s{sST}, s{sT0}')
    VS = 220
    VS = 40
    for tt in range(4): a(f'v_add_u32 v{VS+tt}, {tt*18432}, v{VA}')
    vRB, vRB2 = 46, 47
    a('s_waitcnt lgkmcnt(0)')
    a('s_barrier')
    stamp(a)
    for tt in range(4): a(f'ds_read_b32 v{C1+tt}, v{TMP} offset:{64*tt}')

    def silu_ops(acc, half, single=False):
        ops = []
        def stage(i):
            tt, r = divmod(i, 4)
            x = acc + i; t = TMP + (i % 4)
            return [f'v_mul_f32 v{x}, v{x}, v{C1+tt}', f'v_exp_f32 v{t}, v{x}', f'v_add_f32 v{t}, 1.0, v{t}',
                    f'v_rcp_f32 v{t}, v{t}', f'v_mul_f32 v{x}, v{x}, v{t}']
        for i in range(0, 16, 2):
            A, B = stage(i), stage(i + 1)
            for p, q in zip(A, B): ops += [p, q]
            tt = i // 4
            ops.append(f'v_cvt_pk_bf16_f32 v{PK+4*tt+2*half+(i%4)//2}, v{acc+i}, v{acc+i+1}')
            if i % 4 == 2:
                if single: ops.append(f'ds_write_b64 v{vHS}, {vr(PK+4*tt,2)} offset:{tt*1024}')
                elif half == 1: ops.append(f'ds_write_b128 v{vHW}, {vr(PK+4*tt,4)} offset:{tt*1024}')
        return ops
    FL1 = [o[4:].replace('+', ' ') for o in OPT if o.startswith('fl1=')]; FL1 = FL1[0] if FL1 else 'sc1'
    FL2 = [o[4:].replace('+', ' ') for o in OPT if o.startswith('fl2=')]; FL2 = FL2[0] if FL2 else 'sc1'
    def out_ops(acc, half, single=False):
        ops = []
        for tt in range(4):
            for k in range(2):
                ops.append(f'v_cvt_pk_bf16_f32 v{PK+4*tt+2*half+k}, v{acc+4*tt+2*k}, v{acc+4*tt+2*k+1}')
            if single: ops.append(f'buffer_store_dwordx2 {vr(PK+4*tt,2)}, v{VS+tt}, {sr(SWS,4)}, s{sSS} offen {FL2}')
            elif half == 1: ops.append(f'buffer_store_dwordx4 {vr(PK+4*tt,4)}, v{VS+tt}, {sr(SWS,4)}, s{sST} offen {FL1}')
        return ops

    def tile(slot0, acc, so, fill, breads=None, extra_vm=0, fill_start=3):
        if 'k4nofill' in OPT: fill = []
        nf = len(fill); fi = 0
        gaps = 72 - fill_start
        stores_seen = 0
        for s in range(18):
            for tt in range(4):
                g = 4 * s + tt
                if tt == 0 and 'k4nowait' not in OPT:
                    a(f's_waitcnt vmcnt({extra_vm(s, stores_seen)})')
                if breads is not None:
                    a(f's_waitcnt lgkmcnt({min(11, 71 - g)})')
                a(f'{MF16} {vr(acc+4*tt,4)}, {Rreg(slot0+s)}, {Breg(g)}, {"0" if s == 0 else vr(acc+4*tt,4)}')
                if breads is not None and g + 12 < 72: breads(g + 12)
                if tt == 3 and so is not None and 'k4noload' not in OPT: a(ld(Rreg(slot0+s), s if 'k4same' not in OPT else 0, so if 'k4same' not in OPT else sH))
                if g >= fill_start:
                    want = ((g - fill_start + 1) * nf + gaps - 1) // gaps
                    while fi < want:
                        a(fill[fi])
                        if fill[fi].startswith('buffer_store'): stores_seen += 1
                        fi += 1
        assert fi == nf
    def mk_breads(base):
        a(f'v_add_u32 v{vRB}, {base}, v{VA}')
        a(f'v_add_u32 v{vRB2}, {base+36864}, v{VA}')
        def br(b): a(f'ds_read_b128 {Breg(b)}, v{vRB if b < 36 else vRB2} offset:{(b%36)*1024}')
        for b in range(12): br(b)
        return br
    A0, A1 = ACC, ACC + 16
    br = mk_breads(0)
    tile(0, A0, sP2, [], breads=br, extra_vm=lambda s, st: 35)
    a(f's_add_u32 s{sP1}, s{sP2}, 18432')
    a(f's_add_u32 s{sP2}, s{sP1}, 18432')
    a(f's_mov_b32 s{sIT}, 0')
    stamp(a)
    a.raw('.p2align 6')
    a.label('L_k4_g1')
    tile(18, A1, sP1, silu_ops(A0, 0), extra_vm=lambda s, st: 35)
    tile(0, A0, sP2, silu_ops(A1, 1), extra_vm=lambda s, st: 35)
    a(f'v_add_u32 v{vHW}, 4096, v{vHW}')
    a(f's_add_u32 s{sIT}, s{sIT}, 1')
    a(f's_add_u32 s{sP1}, s{sP1}, 36864')
    a(f's_cmp_eq_u32 s{sIT}, 3')
    a(f's_cselect_b32 s{sP1}, s{sW2}, s{sP1}')
    a(f's_add_u32 s{sP2}, s{sP1}, 18432')
    a(f's_cmp_eq_u32 s{sIT}, 2')
    a(f's_cselect_b32 s{sP2}, s{sSG}, s{sP2}')
    a(f's_cmp_lg_u32 s{sIT}, 4')
    a(f's_cbranch_scc1 L_k4_g1')
    stamp(a)
    for op in silu_ops(A0, 0, single=True): a(op)
    a('s_waitcnt lgkmcnt(0)')
    stamp(a)
    a('s_barrier')
    stamp(a)
    br = mk_breads(HB)
    tile(18, A1, sP1, [], breads=br, extra_vm=lambda s, st: 35)
    a(f's_add_u32 s{sP1}, s{sP1}, 18432')
    a(f's_add_u32 s{sP2}, s{sP1}, 18432')
    a(f's_add_u32 s{sSG}, s{sSG}, {hx(W2F - W1F)}')
    a(f's_mov_b32 s{sIT}, 0')
    stamp(a)
    a.raw('.p2align 6')
    a.label('L_k4_g2')
    tile(0, A0, sP1, out_ops(A1, 0), extra_vm=lambda s, st: 35)
    tile(18, A1, sP2, out_ops(A0, 1), extra_vm=lambda s, st: 35 + st)
    a(f's_add_u32 s{sST}, s{sST}, 1024')
    a(f's_add_u32 s{sIT}, s{sIT}, 1')
    a(f's_add_u32 s{sP1}, s{sP1}, 36864')
    a(f's_cmp_eq_u32 s{sIT}, 3')
    a(f's_cselect_b32 s{sP1}, {hx(OOB)}, s{sP1}')
    a(f's_add_u32 s{sP2}, s{sP1}, 18432')
    a(f's_cmp_eq_u32 s{sIT}, 2')
    a(f's_cselect_b32 s{sP2}, s{sSG}, s{sP2}')
    a(f's_cmp_lg_u32 s{sIT}, 4')
    a(f's_cbranch_scc1 L_k4_g2')
    stamp(a)
    for op in out_ops(A1, 0, single=True): a(op)
    end(a, name, 3, SWS)
    return dict(name=name, grid=256, block=256, lds=147712, vgpr=512, acc=256)

def k5(a):
    name = 'k5_kernel'
    begin(a, name, 256)
    SWS, SO = 4, 8
    a('s_load_dwordx2 s[4:5], s[0:1], 80')
    a('s_load_dwordx2 s[8:9], s[0:1], 64')
    srd(a, SWS, 0x10000000); srd(a, SO, ACT)
    sW, sID, sT0, sT1, sLO, sHI = 30, 31, 32, 33, 34, 35
    a(f'v_lshrrev_b32 v4, 6, v0')
    a(f'v_lshlrev_b32 v2, 4, v0')
    a(f'v_readfirstlane_b32 s{sW}, v4')
    a(f's_mul_i32 s{sT0}, s2, {9*1024}')
    a(f's_add_u32 s{sT1}, s{sT0}, {hx(HOFF)}')
    a(f's_add_u32 s{sT0}, s{sT0}, {hx(PART)}')
    a('s_waitcnt lgkmcnt(0)')
    PR, HR, AC = 16, 48, 52
    for p in range(8):
        a(f'buffer_load_dwordx4 {vr(PR+4*p,4)}, v2, {sr(SWS,4)}, s{sT0} offen')
        if p < 7: a(f's_add_u32 s{sT0}, s{sT0}, {ACT}')
    a(f'buffer_load_dwordx4 {vr(HR,4)}, v2, {sr(SWS,4)}, s{sT1} offen')
    a(f's_lshr_b32 s{sT0}, s2, 1')
    a(f's_mul_i32 s{sT0}, s{sT0}, 18432')
    a(f's_and_b32 s{sT1}, s2, 1')
    a(f's_mul_i32 s{sT1}, s{sT1}, 9')
    a(f's_add_u32 s{sT1}, s{sT1}, s{sW}')
    a(f's_lshl_b32 s{sT1}, s{sT1}, 6')
    a(f's_add_u32 s{sT0}, s{sT0}, s{sT1}')
    a(f'v_and_b32 v4, 15, v0')
    a(f'v_bfe_u32 v5, v0, 4, 2')
    a(f'v_mul_u32_u24 v4, 1152, v4')
    a(f'v_lshl_add_u32 v4, v5, 4, v4')
    a(f's_mov_b32 s{sLO}, 0x00003f80'); a(f's_mov_b32 s{sHI}, 0x3f800000')
    for p in range(8):
        a(f's_waitcnt vmcnt({8-p})')
        for r in range(4):
            for h in range(2):
                a(f'v_dot2_f32_bf16 v{AC+2*r+h}, v{PR+4*p+r}, s{sLO+h}, {"0" if p == 0 else "v%d" % (AC+2*r+h)}')
    a('s_waitcnt vmcnt(0)')
    for r in range(4):
        a(f'v_lshlrev_b32 v{8+2*r}, 16, v{HR+r}')
        a(f'v_and_b32 v{9+2*r}, 0xffff0000, v{HR+r}')
    for i in range(8): a(f'v_fmac_f32 v{8+i}, {hx(f2u(-math.log(2.0)))}, v{AC+i}')
    for r in range(4): a(f'v_cvt_pk_bf16_f32 v{HR+r}, v{8+2*r}, v{9+2*r}')
    a(f'buffer_store_dwordx4 {vr(HR,4)}, v4, {sr(SO,4)}, s{sT0} offen')
    if 'xchk' in OPT:
        a('s_lshl_b32 s51, s2, 2'); a('s_add_u32 s51, s51, 0x7000000')
        a('s_and_b32 s52, s51, 0x700001c')
        a('s_buffer_load_dword s53, s[4:7], s51')
        a('s_buffer_load_dword s54, s[4:7], s52')
        a('s_waitcnt lgkmcnt(0)')
        a('s_cmp_eq_u32 s53, s54')
        a('s_cbranch_scc1 L_end_k5_kernel')
        a('s_mov_b32 s55, 10')
        a.label('L_k5_sl')
        a('s_sleep 127')
        a('s_sub_u32 s55, s55, 1')
        a('s_cmp_lg_u32 s55, 0')
        a('s_cbranch_scc1 L_k5_sl')
    end(a, name, 4, SWS)
    return dict(name=name, grid=256, block=576, lds=0, vgpr=64, acc=64)

def build(kernels):
    a = Asm()
    infos = [k(a) for k in kernels]
    hdr = [f'; @launch kernel={i["name"]} grid=({i["grid"]},1,1) block=({i["block"]},1,1) lds={i["lds"]}' for i in infos]
    hdr += ['.amdgcn_target "amdgcn-amd-amdhsa--gfx950"', '.text'] + [f'.globl {i["name"]}' for i in infos]
    tail = ['.section .rodata,"a"']
    for i in infos:
        tail += ['.p2align 6', f'.amdhsa_kernel {i["name"]}', f'  .amdhsa_next_free_vgpr {i["vgpr"]}', '  .amdhsa_next_free_sgpr 102',
                 f'  .amdhsa_accum_offset {i["acc"]}', '  .amdhsa_group_segment_fixed_size 0', '  .amdhsa_kernarg_size 88',
                 '  .amdhsa_user_sgpr_count 2', '  .amdhsa_user_sgpr_kernarg_segment_ptr 1', '  .amdhsa_system_sgpr_workgroup_id_x 1',
                 '.end_amdhsa_kernel']
    print('nops inserted:', a.nops, file=sys.stderr)
    return '\n'.join(hdr) + '\n' + a.text() + '\n'.join(tail) + '\n'

if __name__ == '__main__':
    out = sys.argv[1]
    if len(sys.argv) > 2 and 'stamp' in sys.argv[2:]: STAMP = True
    OPT = set(sys.argv[2:])
    open(out, 'w').write(build([k1, k2, k3, k4, k5]))
```

```python
import sys, math, struct
from asmlib import Asm, vr, sr

NAME = 'sequential_preLN__grouped_kv_mqa__dense_activation_silu__prompt'
QOFF, KVOFF, OOFF, HOFF, WOF, W1F, W2F, PART = 0x0, 0x300000, 0x400000, 0x700000, 0xA00000, 0x1000000, 0x1600000, 0x2000000
ACT = 2048 * 1152
GRP = 9472
VFR = 608
WOSL = 18 * 4608
OOB = 0x40000000
MF16 = 'v_mfma_f32_16x16x32_bf16'
MF32 = 'v_mfma_f32_32x32x16_bf16'
MF8 = 'v_mfma_f32_32x32x8_bf16'
def f2u(x): return struct.unpack('<I', struct.pack('<f', x))[0]
def hx(x): return f'0x{x & 0xffffffff:08x}'
LOG2E = 1.4426950408889634
STAMP = False
OPT = set()

def srd(a, b, n):
    a(f's_mov_b32 s{b+2}, {hx(n)}')
    a(f's_mov_b32 s{b+3}, 0x00020000')

def begin(a, name, nwg):
    a.raw('.p2align 8')
    a.raw(f'.type {name},@function')
    a.raw(f'{name}:')
    a.reset_hist()
    a(f's_cmp_ge_u32 s2, {nwg}')
    a(f's_cbranch_scc1 L_end_{name}')
    global NST
    NST = 0
    if 'dbgt' in OPT:
        a('s_memrealtime s[74:75]')
        a('s_load_dwordx2 s[76:77], s[0:1], 72')
    if STAMP:
        a('s_memtime s[74:75]')
        for i in range(76, 100, 2): a(f's_mov_b32 s{i}, 0')
    stamp(a)

NST = 0
def stamp(a, idx=None):
    global NST
    if idx is None: idx = NST
    NST = idx + 1
    assert idx < 11
    if STAMP: a(f's_{"memtime" if "cyc" in OPT and idx > 0 else "memrealtime"} s[{76+2*idx}:{77+2*idx}]')

def end(a, name, kidx, ws):
    if STAMP:
        a('s_waitcnt vmcnt(0) lgkmcnt(0)')
        a('s_memrealtime s[98:99]')
        a('s_memtime s[72:73]')
        a('s_getreg_b32 s100, hwreg(HW_REG_XCC_ID)')
        a('s_mov_b64 exec, -1')
        a('v_lshrrev_b32 v2, 6, v0')
        a('v_lshlrev_b32 v2, 6, v2')
        a(f's_lshl_b32 s3, s2, 10')
        a(f's_add_u32 s3, s3, {hx(0x8000000 + kidx * 0x80000)}')
        a('s_waitcnt lgkmcnt(0)')
        a('s_sub_u32 s72, s72, s74')
        if 'cyc' in OPT:
            for i in range(1, 11):
                a(f's_cmp_eq_u32 s{76+2*i}, 0')
                a(f's_cselect_b32 s73, 0, s74')
                a(f's_sub_u32 s{76+2*i}, s{76+2*i}, s73')
        for q in range(3):
            for r in range(4): a(f'v_mov_b32 v{4+r}, s{76+8*q+2*r}')
            a(f'buffer_store_dwordx4 v[4:7], v2, {sr(ws,4)}, s3 offen offset:{16*q}')
            a('s_nop 4')
        a('v_mov_b32 v4, s72'); a('v_mov_b32 v5, s100'); a('v_mov_b32 v6, s100'); a('v_mov_b32 v7, s101')
        a(f'buffer_store_dwordx4 v[4:7], v2, {sr(ws,4)}, s3 offen offset:48')
    if 'dbgt' in OPT:
        a('s_waitcnt vmcnt(0) lgkmcnt(0)')
        a('s_memrealtime s[72:73]')
        a(f's_sub_u32 s76, s76, {512*kidx}')
        a('s_subb_u32 s77, s77, 0')
        srd(a, 76, 256)
        a('s_mov_b64 exec, 1')
        a('v_mov_b32 v4, 0')
        a('s_waitcnt lgkmcnt(0)')
        a('s_not_b32 s74, s74')
        a('v_mov_b32 v5, s72')
        a('v_mov_b32 v6, s74')
        a(f'buffer_atomic_umax v5, v4, s[76:79], 0 offen offset:{8*kidx+4}')
        a(f'buffer_atomic_umax v6, v4, s[76:79], 0 offen offset:{8*kidx}')
    a.label(f'L_end_{name}')
    a('s_endpgm')

def tbj(a, stb, sj, st):
    a(f's_and_b32 s{st}, s2, 7')
    a(f's_lshl_b32 s{stb}, s{st}, 2')
    a(f's_lshr_b32 s{st}, s2, 6')
    a(f's_add_u32 s{stb}, s{stb}, s{st}')
    a(f's_bfe_u32 s{sj}, s2, 0x30003')

def ln_center(a, X, vones, vmean, vvar, vt, sc_lo, sc_hi, waits, post=None):
    for r in range(4): a(f'v_mov_b32 v{vones+r}, 0x3f803f80')
    for s in range(18):
        waits(s)
        a(f'{MF16} {vr(vmean,4)}, {vr(vones,4)}, {vr(X+4*s,4)}, {"0" if s == 0 else vr(vmean,4)}')
    a(f'v_mul_f32 v{vmean}, {hx(f2u(-1.0/576))}, v{vmean}')
    def d(r):
        t = vt + 2 * (r % 3)
        a(f'v_dot2_f32_bf16 v{t}, v{X+r}, s{sc_lo}, v{vmean}')
        a(f'v_dot2_f32_bf16 v{t+1}, v{X+r}, s{sc_hi}, v{vmean}')
    def c(r):
        t = vt + 2 * (r % 3)
        a(f'v_cvt_pk_bf16_f32 v{X+r}, v{t}, v{t+1}')
    d(0); d(1)
    for r in range(72):
        if r + 2 < 72: d(r + 2)
        c(r)
        if r % 4 == 0 and r >= 4:
            s = r // 4 - 1
            a(f'{MF16} {vr(vvar,4)}, {vr(X+4*s,4)}, {vr(X+4*s,4)}, {"0" if s == 0 else vr(vvar,4)}')
            if post: post(s)
    a(f'{MF16} {vr(vvar,4)}, {vr(X+68,4)}, {vr(X+68,4)}, {vr(vvar,4)}')
    if post: post(17)

def ln_rstd(a, vvar, vlane, vt, sm):
    a(f's_mov_b32 s{sm}, 0xaaaaaaaa'); a(f's_mov_b32 s{sm+1}, 0xaaaaaaaa')
    a(f's_mov_b32 s{sm+2}, 0xcccccccc'); a(f's_mov_b32 s{sm+3}, 0xcccccccc')
    a(f'v_and_b32 v{vt}, 15, v{vlane}')
    a(f'v_lshrrev_b32 v{vt+1}, 2, v{vt}')
    a(f'v_lshl_add_u32 v{vt}, v{vt+1}, 4, v{vt}')
    a(f'v_lshlrev_b32 v{vt}, 2, v{vt}')
    a(f'v_cndmask_b32 v{vvar}, v{vvar}, v{vvar+1}, {sr(sm,2)}')
    a(f'v_cndmask_b32 v{vvar+2}, v{vvar+2}, v{vvar+3}, {sr(sm,2)}')
    a(f'v_cndmask_b32 v{vvar}, v{vvar}, v{vvar+2}, {sr(sm+2,2)}')
    a(f'ds_bpermute_b32 v{vvar}, v{vt}, v{vvar}')
    a(f'v_mov_b32 v{vt+1}, {hx(f2u(1e-5))}')
    a('s_waitcnt lgkmcnt(0)')
    a(f'v_fmac_f32 v{vt+1}, {hx(f2u(1.0/576))}, v{vvar}')
    a(f'v_rsq_f32 v{vvar}, v{vt+1}')

def k1(a):
    name = 'k1_kernel'
    begin(a, name, 256)
    SX, SWQ, SKV, SWS = 4, 8, 12, 16
    a('s_load_dwordx2 s[4:5], s[0:1], 0')
    a('s_load_dwordx2 s[8:9], s[0:1], 8')
    a('s_load_dwordx4 s[24:27], s[0:1], 16')
    a('s_load_dwordx2 s[16:17], s[0:1], 80')
    srd(a, SX, ACT); srd(a, SWQ, 576 * 1152); srd(a, SKV, 576 * 36); srd(a, SWS, 0x10000000)
    sTB, sJ, sW, sTT, sT0, sT1, sXO = 30, 31, 32, 33, 34, 35, 36
    sM = 40
    sLO, sHI = 46, 47
    tbj(a, sTB, sJ, sT0)
    vL, vG, vT = 1, 2, 3
    a(f'v_lshrrev_b32 v4, 6, v0')
    a(f'v_and_b32 v{vL}, 63, v0')
    a(f'v_readfirstlane_b32 s{sW}, v4')
    a(f'v_lshrrev_b32 v{vG}, 4, v{vL}')
    a(f'v_and_b32 v{vT}, 15, v{vL}')
    vXO = 20
    a(f'v_mul_u32_u24 v{vXO}, 1152, v{vT}')
    a(f'v_lshl_add_u32 v21, v{vG}, 3, v{vXO}')
    a(f'v_lshl_add_u32 v{vXO}, v{vG}, 4, v{vXO}')
    a(f's_lshl_b32 s{sTT}, s{sTB}, 2')
    a(f's_add_u32 s{sTT}, s{sTT}, s{sW}')
    a(f's_mul_i32 s{sXO}, s{sTT}, {16*1152}')
    X = 32
    a('s_waitcnt lgkmcnt(0)')
    for s in range(18):
        a(f'buffer_load_dwordx4 {vr(X+4*s,4)}, v{vXO}, {sr(SX,4)}, s{sXO} offen offset:{64*s}')
    for m in range(5):
        a(f'v_add_u32 v4, {256*m}, v0')
        a(f'v_mul_u32_u24 v5, 6554, v4')
        a(f'v_lshrrev_b32 v5, 16, v5')
        a(f'v_mul_u32_u24 v6, 10, v5')
        a(f'v_sub_u32 v6, v4, v6')
        a(f'v_lshrrev_b32 v7, 1, v5')
        a(f'v_and_b32 v7, 4, v7')
        a(f'v_xor_b32 v5, v5, v7')
        a(f'v_mul_u32_u24 v5, 1152, v5')
        a(f'v_lshl_add_u32 v5, v6, 4, v5')
        a(f'v_cmp_eq_u32 vcc, 9, v6')
        a(f'v_mov_b32 v7, {hx(OOB)}')
        a(f's_add_u32 s{sT0}, s{sW}, {4*m}')
        a(f's_mul_i32 s{sT1}, s{sT0}, 13')
        a(f'v_cndmask_b32 v{10+m}, v5, v7, vcc')
        a(f's_lshr_b32 s{sT1}, s{sT1}, 6')
        a(f's_add_u32 s{sT0}, s{sT0}, s{sT1}')
        a(f's_lshl_b32 s{sM+m}, s{sT0}, 10')
    a(f's_cmp_lt_u32 s{sJ}, 3')
    a(f's_cselect_b32 s12, s24, s26')
    a(f's_cselect_b32 s13, s25, s27')
    a(f's_cselect_b32 s{sT0}, 0, 3')
    a(f's_sub_u32 s{sT0}, s{sJ}, s{sT0}')
    a(f's_lshl_b32 s{sT1}, s{sT0}, 4')
    a(f's_min_u32 s{sT1}, s{sT1}, 20')
    a(f's_mul_i32 s{sT0}, s{sW}, {32*36}')
    sKO = 37
    a(f's_add_u32 s{sKO}, s{sT0}, s{sT1}')
    a(f'v_mul_u32_u24 v15, 36, v{vL}')
    a(f'v_cmp_gt_u32 vcc, 32, v{vL}')
    sWO, sKM = 38, 39
    a(f's_mul_i32 s{sWO}, s{sJ}, 144')
    a(f's_mul_i32 s{sKM}, s{sW}, 6144')
    a(f'v_cndmask_b32 v15, v7, v15, vcc')
    ndma = 0
    for sb in range(5):
        for m in range(5 if sb < 4 else 3):
            a(f's_add_u32 m0, s{sM+m}, {sb*24576}')
            a(f'buffer_load_dwordx4 v{10+m}, {sr(SWQ,4)}, s{sWO} offen lds')
            ndma += 1
        a(f's_add_u32 m0, s{sKM}, {sb*24576+5120}')
        a(f's_add_u32 s{sWO}, s{sWO}, {128*1152}')
        a(f'buffer_load_dwordx4 v15, {sr(SKV,4)}, s{sKO} offen lds')
        a(f's_add_u32 s{sKO}, s{sKO}, {128*36}')
        ndma += 1
    A0, A1, A40, A41 = 16, 17, 18, 19
    a(f'v_bfe_u32 v4, v{vL}, 2, 2')
    a(f'v_lshl_add_u32 v4, v{vG}, 3, v4')
    a(f'v_and_b32 v5, 1, v{vG}')
    a(f'v_lshlrev_b32 v5, 2, v5')
    a(f'v_xor_b32 v6, v4, v5')
    a(f'v_xor_b32 v7, 4, v6')
    a(f'v_and_b32 v5, 3, v{vL}')
    a(f'v_lshlrev_b32 v5, 3, v5')
    a(f'v_mad_u32_u24 v{A0}, v6, 160, v5') if False else None
    a(f'v_mul_u32_u24 v{A0}, 160, v6'); a(f'v_add_u32 v{A0}, v{A0}, v5')
    a(f'v_mul_u32_u24 v{A1}, 160, v7'); a(f'v_add_u32 v{A1}, v{A1}, v5')
    a(f'v_lshl_add_u32 v4, v4, 4, v5')
    a(f'v_add_u32 v4, {5120-16-128}, v4')
    a(f'v_add_u32 v6, 64, v4')
    a(f'v_cmp_gt_u32 vcc, 16, v5')
    a(f's_mov_b32 s{sLO}, 0x00003f80'); a(f's_mov_b32 s{sHI}, 0x3f800000')
    a(f'v_cndmask_b32 v{A40}, v4, v{A0}, vcc')
    a(f'v_cndmask_b32 v{A41}, v6, v{A1}, vcc')
    WR, ACC, MEAN, VAR, ONES, TMP = 104, 132, 152, 156, 160, 22
    stamp(a)
    ln_center(a, X, ONES, MEAN, VAR, TMP, sLO, sHI, lambda s: (a(f's_waitcnt vmcnt({ndma + 17 - s})'), stamp(a) if s == 17 else None))
    stamp(a)
    a('s_waitcnt vmcnt(0)')
    stamp(a)
    a('s_barrier')
    stamp(a)
    D = 7
    def rd(f):
        s, ct = divmod(f, 5)
        if f == 45:
            for r in (A0, A1, A40, A41): a(f'v_add_u32 v{r}, {9*6144}, v{r}')
        off = (s % 9) * 6144 + ct * 32
        r = WR + 4 * (f % D)
        a(f'ds_read_b64_tr_b16 {vr(r,2)}, v{A0 if ct < 4 else A40} offset:{off}')
        a(f'ds_read_b64_tr_b16 {vr(r+2,2)}, v{A1 if ct < 4 else A41} offset:{off}')
    for f in range(D): rd(f)
    for f in range(90):
        s, ct = divmod(f, 5)
        a(f's_waitcnt lgkmcnt({2 * min(D - 1, 89 - f)})')
        a(f'{MF16} {vr(ACC+4*ct,4)}, {vr(WR+4*(f%D),4)}, {vr(X+4*s,4)}, {"0" if s == 0 else vr(ACC+4*ct,4)}')
        if f + D < 90: rd(f + D)
    stamp(a)
    ln_rstd(a, VAR, vL, TMP, 48)
    QS = LOG2E / math.sqrt(18.0)
    a(f'v_cmp_gt_u32 vcc, 32, v{vL}')
    a(f'v_mul_f32 v{VAR+1}, {hx(f2u(QS))}, v{VAR}')
    a(f's_mul_i32 s{sT0}, s{sJ}, 144')
    a(f's_add_u32 s{sXO}, s{sXO}, s{sT0}')
    if QOFF: a(f's_add_u32 s{sXO}, s{sXO}, {hx(QOFF)}')
    a(f'v_cndmask_b32 v{VAR+2}, v{VAR}, v{VAR+1}, vcc')
    for ct in range(5):
        for r in range(4):
            a(f'v_mul_f32 v{ACC+4*ct+r}, v{ACC+4*ct+r}, v{VAR+1 if ct < 4 else VAR+2}')
        a(f'v_cvt_pk_bf16_f32 v{ACC+4*ct}, v{ACC+4*ct}, v{ACC+4*ct+1}')
        a(f'v_cvt_pk_bf16_f32 v{ACC+4*ct+1}, v{ACC+4*ct+2}, v{ACC+4*ct+3}')
        if ct == 4: a('s_mov_b32 exec_hi, 0')
        a(f'buffer_store_dwordx2 {vr(ACC+4*ct,2)}, v21, {sr(SWS,4)}, s{sXO} offen offset:{32*ct}')
    P0, P1 = ACC + 16, ACC + 17
    sGB = 38
    a('s_mov_b64 exec, -1')
    a(f's_lshr_b32 s{sT0}, s{sTT}, 3')
    a(f's_mul_i32 s{sGB}, s{sT0}, {GRP}')
    a(f's_add_u32 s{sGB}, s{sGB}, {hx(KVOFF)}')
    a(f's_cmp_gt_u32 s{sJ}, 2')
    a(f's_cbranch_scc1 L_k1_v')
    a(f's_and_b32 s{sT0}, s{sTT}, 1')
    a(f's_lshl_b32 s{sT0}, s{sT0}, 8')
    a(f's_add_u32 s{sGB}, s{sGB}, s{sT0}')
    a(f's_bfe_u32 s{sT1}, s{sTT}, 0x20001')
    a(f'v_lshlrev_b32 v4, 4, v{vT}')
    a(f's_cmp_eq_u32 s{sJ}, 2')
    a(f's_cbranch_scc1 L_k1_k2')
    a(f's_lshl_b32 s{sT1}, s{sT1}, 10')
    a(f's_lshl_b32 s{sT0}, s{sJ}, 9')
    a(f's_add_u32 s{sGB}, s{sGB}, s{sT1}')
    a(f's_add_u32 s{sGB}, s{sGB}, s{sT0}')
    a(f'v_and_b32 v5, 1, v{vG}')
    a(f'v_lshl_add_u32 v4, v5, 3, v4')
    a('s_mov_b32 exec_lo, 0')
    a(f'buffer_store_dwordx2 {vr(P0,2)}, v4, {sr(SWS,4)}, s{sGB} offen')
    a(f's_branch L_k1_done')
    a.label('L_k1_k2')
    a(f's_lshl_b32 s{sT1}, s{sT1}, 2')
    a(f's_add_u32 s{sGB}, s{sGB}, s{sT1}')
    a(f's_add_u32 s{sGB}, s{sGB}, 4096')
    a('s_mov_b32 exec_lo, 0')
    a('s_mov_b32 exec_hi, 0xffff0000')
    a(f'buffer_store_dword v{P1}, v4, {sr(SWS,4)}, s{sGB} offen')
    a(f's_branch L_k1_done')
    a.label('L_k1_v')
    a(f's_and_b32 s{sT0}, s{sTT}, 7')
    a(f's_mul_i32 s{sT0}, s{sT0}, {VFR}')
    a(f's_add_u32 s{sGB}, s{sGB}, s{sT0}')
    a(f's_add_u32 s{sGB}, s{sGB}, 4608')
    a(f's_cmp_gt_u32 s{sJ}, 5')
    a(f's_cbranch_scc1 L_k1_c')
    a(f'v_bfe_u32 v4, v{vT}, 2, 1')
    a(f'v_mul_u32_u24 v4, 288, v4')
    a(f'v_and_b32 v5, 1, v{vG}')
    a(f'v_lshl_add_u32 v4, v5, 7, v4')
    a(f'v_and_b32 v5, 8, v{vT}')
    a(f'v_add_u32 v4, v4, v5')
    a(f'v_and_b32 v5, 3, v{vT}')
    a(f'v_lshl_add_u32 v4, v5, 1, v4')
    a('s_mov_b32 exec_lo, 0')
    a(f's_cmp_eq_u32 s{sJ}, 5')
    a(f's_cbranch_scc1 L_k1_v2')
    a(f's_sub_u32 s{sT0}, s{sJ}, 3')
    a(f's_lshl_b32 s{sT0}, s{sT0}, 6')
    a(f's_add_u32 s{sGB}, s{sGB}, s{sT0}')
    a(f'buffer_store_short v{P0}, v4, {sr(SWS,4)}, s{sGB} offen')
    a(f'buffer_store_short_d16_hi v{P0}, v4, {sr(SWS,4)}, s{sGB} offen offset:16')
    a(f'buffer_store_short v{P1}, v4, {sr(SWS,4)}, s{sGB} offen offset:32')
    a(f'buffer_store_short_d16_hi v{P1}, v4, {sr(SWS,4)}, s{sGB} offen offset:48')
    a(f's_branch L_k1_done')
    a.label('L_k1_v2')
    a('s_mov_b32 exec_hi, 0xffff0000')
    a(f'buffer_store_short v{P1}, v4, {sr(SWS,4)}, s{sGB} offen offset:128')
    a(f'buffer_store_short_d16_hi v{P1}, v4, {sr(SWS,4)}, s{sGB} offen offset:144')
    a(f's_branch L_k1_done')
    a.label('L_k1_c')
    a(f's_cmp_eq_u32 s{sJ}, 7')
    a(f's_cbranch_scc1 L_k1_done')
    a(f'v_cmp_gt_u32 vcc, 4, v{vL}')
    a(f'v_lshlrev_b32 v4, 2, v{vL}')
    a(f'v_mov_b32 v5, 0')
    a(f'v_cndmask_b32 v5, v5, v{ONES}, vcc')
    a('s_mov_b64 exec, 0xff')
    a(f'buffer_store_dword v5, v4, {sr(SWS,4)}, s{sGB} offen offset:576')
    a.label('L_k1_done')
    if 'xchk' in OPT:
        a('s_getreg_b32 s50, hwreg(HW_REG_XCC_ID)')
        a('s_and_b32 s50, s50, 15')
        a('s_mov_b64 exec, 1')
        a('v_mov_b32 v4, 0'); a('v_mov_b32 v5, s50')
        a('s_lshl_b32 s51, s2, 2'); a('s_add_u32 s51, s51, 0x7000000')
        a(f'buffer_store_dword v5, v4, {sr(SWS,4)}, s51 offen')
    end(a, name, 0, SWS)
    return dict(name=name, grid=256, block=256, lds=122880, vgpr=168, acc=168)

def k2(a):
    name = 'k2_kernel'
    begin(a, name, 256)
    SWS, SSRC = 4, 8
    a('s_load_dwordx2 s[4:5], s[0:1], 80')
    a('s_load_dwordx2 s[24:25], s[0:1], 32')
    a('s_load_dwordx4 s[20:23], s[0:1], 48')
    srd(a, SWS, 0x10000000)
    sTB, sJ, sW, sTT, sS, sT0, sT1, sG, sEV, sFIN = 30, 31, 32, 33, 34, 35, 36, 37, 38, 39
    tbj(a, sTB, sJ, sT0)
    vL = 1
    a(f'v_lshrrev_b32 v4, 6, v0')
    a(f'v_and_b32 v{vL}, 63, v0')
    a(f'v_readfirstlane_b32 s{sW}, v4')
    NG = 8 if 'w16' in OPT else 16
    if 'w16' in OPT: a(f's_and_b32 s{sW}, s{sW}, 7')
    vAK, vA2, vAV = 2, 3, 12
    a(f'v_lshlrev_b32 v{vAK}, 4, v{vL}')
    a(f's_lshl_b32 s{sT0}, s{sW}, 10')
    a(f's_add_u32 s{sT1}, s{sT0}, {hx(KVOFF)}')
    a(f's_mov_b32 m0, s{sT0}')
    a('s_waitcnt lgkmcnt(0)')
    def dma(n):
        a(f'buffer_load_dwordx4 v{vAK}, {sr(SWS,4)}, s{sT1} offen lds')
        if n < 18:
            a(f's_add_u32 m0, m0, 8192')
            a(f's_add_u32 s{sT1}, s{sT1}, 8192')
    dma(0); dma(1)
    S0, S1, O, P, K16, K2, V0, V1, Q, QA, QB = 16, 32, 48, 64, 72, 76, 80, 84, 88, 92, 94
    vT, vHH, vHL = 5, 6, 7
    a(f'v_and_b32 v{vT}, 15, v{vL}')
    a(f'v_bfe_u32 v{vHH}, v{vL}, 4, 1')
    a(f'v_lshrrev_b32 v{vHL}, 5, v{vL}')
    a(f'v_mul_u32_u24 v8, 1152, v{vT}')
    a(f'v_mul_u32_u24 v9, 36, v{vHH}')
    a(f'v_add_u32 v8, v8, v9')
    a(f'v_lshl_add_u32 v8, v{vHL}, 4, v8')
    a(f's_and_b32 s{sTT}, s{sW}, 3')
    a(f's_lshl_b32 s{sTB}, s{sTB}, 2')
    a(f's_add_u32 s{sTT}, s{sTT}, s{sTB}')
    a(f's_lshr_b32 s{sS}, s{sW}, 2')
    a(f's_lshl_b32 s{sT0}, s{sJ}, 1')
    a(f's_add_u32 s{sS}, s{sS}, s{sT0}')
    a(f's_mul_i32 s{sTT}, s{sTT}, 18432')
    a(f's_mul_i32 s{sT0}, s{sS}, 72')
    a(f's_add_u32 s{sT0}, s{sT0}, s{sTT}')
    if QOFF: a(f's_add_u32 s{sT0}, s{sT0}, {hx(QOFF)}')
    vQ2 = 13
    a(f'buffer_load_dwordx4 {vr(Q,4)}, v8, {sr(SWS,4)}, s{sT0} offen')
    a(f'buffer_load_dword v{vQ2}, v8, {sr(SWS,4)}, s{sT0} offen offset:32')
    for n in range(2, 19): dma(n)
    a(f'v_cmp_gt_u32 vcc, 32, v{vL}')
    a(f'v_add_u32 v8, 4096, v{vAK}')
    a(f'v_mov_b32 v9, {4608+576}')
    a(f'v_cndmask_b32 v{vA2}, v9, v8, vcc')
    a(f'v_and_b32 v8, 31, v{vL}')
    a(f'v_mul_u32_u24 v9, 18, v{vHL}')
    a(f'v_add_u32 v9, v9, v8')
    a(f'v_cmp_lt_u32 vcc, 17, v8')
    a(f'v_mov_b32 v10, 37')
    a(f'v_and_b32 v8, 27, v8')
    a(f'v_cndmask_b32 v9, v9, v10, vcc')
    a(f'v_cmp_eq_u32 vcc, 18, v8')
    a(f'v_mov_b32 v10, 36')
    a(f's_mov_b32 s{sEV}, 1')
    a(f's_mov_b32 s{sFIN}, 0')
    if 'noside' not in OPT: a(f'v_mov_b32 v137, {hx(OOB)}'); a(f'v_mov_b32 v138, {hx(OOB)}'); a('s_mov_b32 s47, 0')
    if 'prio' in OPT:
        a(f's_cmp_lt_u32 s{sW}, 4')
        a('s_cbranch_scc1 L_k2_np')
        a('s_setprio 1')
        a.label('L_k2_np')
    a(f'v_cndmask_b32 v9, v9, v10, vcc')
    a(f'v_lshlrev_b32 v{vAV}, 4, v9')
    a(f'v_cmp_gt_u32 vcc, 32, v{vL}')
    stamp(a)
    a(f's_waitcnt vmcnt(17)')
    a(f'v_cndmask_b32 v{vQ2}, 0, v{vQ2}, vcc')
    a(f'v_mov_b32 v{QA+1}, 0')
    a(f'v_mov_b32 v{QA}, v{vQ2}')
    a('s_barrier')
    a(f'ds_read_b128 {vr(K16,4)}, v{vAK}')
    a(f'ds_read_b128 {vr(K2,4)}, v{vA2}')
    a(f's_waitcnt lgkmcnt(0)')
    a(f'{MF32} {vr(S0,16)}, {vr(K16,4)}, {vr(Q,4)}, 0')
    a(f'{MF8} {vr(S0,16)}, {vr(K2,2)}, {vr(QA,2)}, {vr(S0,16)}')
    vM = 14
    a(f'v_max3_f32 v{vM}, v{S0}, v{S0+1}, v{S0+2}')
    for r in range(3, 15, 2): a(f'v_max3_f32 v{vM}, v{vM}, v{S0+r}, v{S0+r+1}')
    a(f'v_max_f32 v{vM}, v{vM}, v{S0+15}')
    a.label('L_k2_setm')
    a(f'v_mov_b32 v8, v{vM}')
    a(f'v_permlane32_swap_b32 v8, v{vM}')
    a(f'v_max_f32 v8, v8, v{vM}')
    a(f'v_mul_f32 v8, -1.0, v8')
    a(f'v_and_b32 v9, 0xffff0000, v8')
    a(f'v_sub_f32 v8, v8, v9')
    a(f'v_and_b32 v10, 0xffff0000, v8')
    a(f'v_sub_f32 v8, v8, v10')
    a(f'v_lshrrev_b32 v9, 16, v9')
    a(f'v_or_b32 v9, v9, v10')
    a(f'v_lshrrev_b32 v8, 16, v8')
    a(f'v_cmp_gt_u32 vcc, 32, v{vL}')
    a(f'ds_read_b128 {vr(V0,4)}, v{vAV} offset:4608')
    for r in range(16): a(f'v_mov_b32 v{O+r}, 0')
    a(f'v_cndmask_b32 v{QA}, v9, v{vQ2}, vcc')
    a(f'v_cndmask_b32 v{QA+1}, v8, v{O}, vcc')
    a(f'v_cndmask_b32 v{QB}, v9, v{O}, vcc')
    a(f'v_cndmask_b32 v{QB+1}, v8, v{vQ2}, vcc')
    for r in (S1+14, S1+15, P+4, P+5, P+6, V1, V1+1, V1+2, V1+3): a(f'v_mov_b32 v{r}, 0')
    a(f'{MF32} {vr(S0,16)}, {vr(K16,4)}, {vr(Q,4)}, 0')
    a(f'{MF8} {vr(S0,16)}, {vr(K2,2)}, {vr(QA,2)}, {vr(S0,16)}')
    a(f'ds_read_b128 {vr(K16,4)}, v{vAK} offset:1024')
    a(f's_mov_b32 s{sG}, 0')
    stamp(a)
    a(f's_waitcnt lgkmcnt(0)')
    a('s_nop 8')
    a.raw('.p2align 6')
    a.label('L_k2_loop')
    a0 = a
    def a(t):
        if 'nods' in OPT and t.startswith('ds_read'): return
        if 'nowt' in OPT and t.startswith('s_waitcnt'): return
        if 'nomf8' in OPT and t.startswith(MF8): return
        if 'nopv' in OPT and t.startswith(f'{MF32} {vr(O,16)}'): return
        if 'noqk' in OPT and t.startswith(MF32) and not t.startswith(f'{MF32} {vr(O,16)}'): return
        if 'nocvt' in OPT and t.startswith('v_cvt'): return
        if t.startswith('v_cvt'):
            o = t.replace(',', '').split()
            if 'csdwa' in OPT: t = f'v_mov_b32_sdwa {o[1]}, {o[2]} dst_sel:WORD_0 dst_unused:UNUSED_PRESERVE src0_sel:WORD_1'
            if 'cmov' in OPT: t = f'v_mov_b32 {o[1]}, {o[2]}'
            if 'cor' in OPT: t = f'v_or_b32 {o[1]}, {o[2]}, {o[3]}'
            if 'cbfi' in OPT: t = f'v_bfi_b32 {o[1]}, {o[2]}, {o[3]}, {o[1]}'
            if 'cadd' in OPT: t = f'v_add_f32 {o[1]}, {o[2]}, {o[3]}'
            if 'corsdwa' in OPT: t = f'v_or_b32_sdwa {o[1]}, {o[2]}, {o[3]} dst_sel:DWORD dst_unused:UNUSED_PAD src0_sel:WORD_1 src1_sel:DWORD'
            if 'calign' in OPT: t = f'v_alignbit_b32 {o[1]}, {o[2]}, {o[3]}, 16'
            if 'cpkmov' in OPT: t = f'v_pack_b32_f16 {o[1]}, {o[2]}, {o[3]} op_sel:[1,1,0]'
        if 'noexp' in OPT and t.startswith('v_exp'): return
        if t.startswith(('v_mfma', 'ds_read')):
            import re
            def f(m):
                lo = int(m.group(1))
                if 'agab' in OPT and lo >= 72: return 'a' + m.group(0)[1:]
                if 'ago' in OPT and lo == O: return 'a' + m.group(0)[1:]
                return m.group(0)
            t = re.sub(r'v\[(\d+):(\d+)\]', f, t)
        a0(t)
    for T in range(4):
        S, Sn = (S0, S1) if T % 2 == 0 else (S1, S0)
        e = lambda r: f'v_exp_f32{"_e64" if "e64" in OPT else ""} v{S+r}, v{S+r}'
        c = lambda k: f'v_cvt_pk_bf16_f32 v{P+k}, v{S+2*k}, v{S+2*k+1}'
        st = [e(0), f'v_cvt_pk_bf16_f32 v{P+7}, v{Sn+14}, v{Sn+15}']
        for k in range(7): st += [e(2*k+1), e(2*k+2), c(k)]
        st.append(e(15))
        if 'lag' in OPT:
            cn = lambda k: f'v_cvt_pk_bf16_f32 v{P+k}, v{Sn+2*k}, v{Sn+2*k+1}'
            st = [e(0), cn(6), e(1), e(2), cn(7)]
            for k in range(6): st += [e(2*k+3), e(2*k+4), c(k)]
            st.append(e(15))
        if 'grp' in OPT:
            cn = lambda k: f'v_cvt_pk_bf16_f32 v{P+k}, v{Sn+2*k}, v{Sn+2*k+1}'
            st = [e(0), cn(6), cn(7), e(1), e(2), e(3), e(4), c(0), c(1), e(5), e(6), e(7), e(8), c(2), c(3), e(9), e(10), e(11), e(12), c(4), c(5), e(13), e(14), e(15)]
        if 'oop' in OPT:
            st = [x.replace('v_exp_f32 v', 'v_exp_f32 v1', 1) if x.startswith('v_exp') and len(x.split()[1]) == 4 and int(x.split()[1][1:-1]) < 44 else x for x in st]
        Tn = (T + 1) % 4
        if 'pp4' in OPT and T in (0, 3): a(f's_setprio {1 if T == 0 else 0}')
        if 'pp2' in OPT and T in (0, 2): a(f's_setprio {1 if T == 0 else 0}')
        for idx, op in enumerate(st):
            a(op)
            if idx == 1:
                a(f's_waitcnt lgkmcnt({3 if T == 3 else 2})')
                a(f'{MF32} {vr(Sn,16)}, {vr(K16,4)}, {vr(Q,4)}, 0')
                a(f'ds_read_b128 {vr(K16,4)}, v{vAK} offset:{(T+2)*1024 if T < 2 else GRP+(T-2)*1024}')
            if idx == 6:
                a(f's_waitcnt lgkmcnt({3 if T == 3 else 2})')
                a(f'{MF32} {vr(O,16)}, {vr(V1,4)}, {vr(P+4,4)}, {vr(O,16)}')
                a(f'ds_read_b128 {vr(V1,4)}, v{vAV} offset:{4608+(2*T+1)*VFR}')
            if idx == 11:
                if T == 3: a(f's_waitcnt lgkmcnt(3)')
                a(f'{MF8} {vr(Sn,16)}, {vr(K2+2*(Tn//2),2)}, {vr(QA if Tn % 2 == 0 else QB,2)}, {vr(Sn,16)}')
                if T == 2: a(f'ds_read_b128 {vr(K2,4)}, v{vA2} offset:{GRP}')
            if idx == 17:
                a(f's_waitcnt lgkmcnt({3 if T == 2 else 2})')
                a(f'{MF32} {vr(O,16)}, {vr(V0,4)}, {vr(P,4)}, {vr(O,16)}')
                a(f'ds_read_b128 {vr(V0,4)}, v{vAV} offset:{4608+(2*T+2)*VFR if T < 3 else GRP+4608}')
                if T == 3:
                    a(f's_add_u32 s{sG}, s{sG}, 1')
                    a(f'v_add_u32 v{vAK}, {GRP}, v{vAK}')
                    a(f'v_add_u32 v{vA2}, {GRP}, v{vA2}')
                    a(f'v_add_u32 v{vAV}, {GRP}, v{vAV}')
                    a(f's_cmp_lg_u32 s{sG}, s{sEV}')
    a = a0
    a(f's_cbranch_scc1 L_k2_loop')
    a(f's_cmp_eq_u32 s{sG}, {NG}')
    a(f's_cbranch_scc1 L_k2_fin')
    a(f's_cmp_eq_u32 s{sG}, 1')
    a(f's_cbranch_scc0 L_k2_ev3')
    stamp(a)
    a(f's_waitcnt vmcnt(13)')
    a('s_barrier')
    stamp(a)
    a(f's_mov_b32 s{sEV}, 3')
    a('s_branch L_k2_loop')
    a.label('L_k2_ev3')
    a(f's_cmp_eq_u32 s{sG}, 3')
    a(f's_cbranch_scc0 L_k2_ev8')
    stamp(a)
    a(f's_waitcnt vmcnt(0)')
    a('s_barrier')
    stamp(a)
    sV, sX8, sA, sB, sSO, sIA, sIB, sDO = 40, 41, 42, 43, 44, 45, 46, 47
    R, TR, vSO, vD0, vD1 = 96, 128, 136, 137, 138
    t0, t1, t2, t3 = 140, 141, 142, 143
    a(f's_mov_b32 s{sEV}, {NG}')
    if 'noside' in OPT:
        a('s_branch L_k2_loop')
        a.label('L_k2_ev8')
        a('s_branch L_k2_loop')
        mark = (len(a.out), len(a.seq), list(a.branches), dict(a.labels))
    a(f's_lshl_b32 s{sV}, s{sW}, 5')
    a(f's_lshr_b32 s{sT0}, s2, 3')
    a(f's_add_u32 s{sV}, s{sV}, s{sT0}')
    a(f's_and_b32 s{sX8}, s2, 7')
    a(f's_mov_b32 s11, 0x00020000')
    a(f'v_and_b32 v{t0}, 7, v{vL}')
    a(f'v_bfe_u32 v{t1}, v{vL}, 3, 1')
    a(f'v_lshrrev_b32 v{t2}, 4, v{vL}')
    a(f's_cmp_ge_u32 s{sV}, 162')
    a(f's_cbranch_scc1 L_k2_wo')
    a(f's_cmp_ge_u32 s{sV}, 81')
    a(f's_cselect_b32 s8, s22, s20')
    a(f's_cselect_b32 s9, s23, s21')
    a(f's_mov_b32 s10, {576*4608*2}')
    a(f's_cselect_b32 s{sT0}, 81, 0')
    a(f's_cselect_b32 s{sIA}, 1152, 9216') if False else None
    a(f's_movk_i32 s{sIB}, 0x2400')
    a(f's_cselect_b32 s{sIA}, 1152, s{sIB}')
    a(f's_mov_b32 s{sIB}, {hx(W1F)}')
    a(f's_cselect_b32 s{sDO}, {hx(W2F)}, s{sIB}')
    a(f's_movk_i32 s{sIB}, 1152')
    a(f's_cselect_b32 s{sT1}, {576*1152}, s{sIB}')
    a(f's_sub_u32 s{sV}, s{sV}, s{sT0}')
    a(f's_mul_i32 s{sA}, s{sV}, 57')
    a(f's_lshr_b32 s{sA}, s{sA}, 9')
    a(f's_mul_i32 s{sT0}, s{sA}, 9')
    a(f's_sub_u32 s{sB}, s{sV}, s{sT0}')
    a(f's_mul_i32 s{sSO}, s{sX8}, s{sT1}')
    a(f's_lshl_b32 s{sT0}, s{sA}, 7')
    a(f's_add_u32 s{sSO}, s{sSO}, s{sT0}')
    a(f's_mul_i32 s{sT0}, s{sB}, s{sIA}')
    a(f's_lshl_b32 s{sT0}, s{sT0}, 6')
    a(f's_add_u32 s{sSO}, s{sSO}, s{sT0}')
    a(f's_mov_b32 s{sIB}, s{sIA}')
    a(f's_mul_i32 s{sT0}, s{sX8}, 9')
    a(f's_add_u32 s{sT0}, s{sT0}, s{sA}')
    a(f's_mul_i32 s{sT0}, s{sT0}, 36')
    a(f's_add_u32 s{sT0}, s{sT0}, s{sB}')
    a(f's_lshl_b32 s{sT0}, s{sT0}, 11')
    a(f's_add_u32 s{sDO}, s{sDO}, s{sT0}')
    a(f'v_lshl_add_u32 v{t3}, v{t1}, 2, v{t2}')
    a(f'v_lshlrev_b32 v{t3}, 3, v{t3}')
    a(f'v_mul_u32_u24 v{vSO}, s{sIA}, v{t3}')
    a(f'v_lshl_add_u32 v{vSO}, v{t0}, 4, v{vSO}')
    a(f'v_lshrrev_b32 v{t3}, 2, v{t0}')
    a(f'v_mul_u32_u24 v{t3}, 36, v{t3}')
    a(f'v_add_u32 v{t3}, v{t3}, v{t1}')
    a(f'v_lshlrev_b32 v{vD0}, 10, v{t3}')
    a(f'v_lshl_add_u32 v{vD0}, v{t2}, 8, v{vD0}')
    a(f'v_and_b32 v{t3}, 3, v{t0}')
    a(f'v_lshl_add_u32 v{vD0}, v{t3}, 6, v{vD0}')
    a(f'v_add_u32 v{vD1}, 18432, v{vD0}')
    a(f's_branch L_k2_sload')
    a.label('L_k2_wo')
    a(f's_sub_u32 s{sV}, s{sV}, 162')
    a(f's_lshl_b32 s{sV}, s{sV}, 3')
    a(f's_add_u32 s{sV}, s{sV}, s{sX8}')
    a(f's_cmp_ge_u32 s{sV}, 81')
    a(f's_cbranch_scc1 L_k2_loop')
    a(f's_mov_b32 s8, s24')
    a(f's_mov_b32 s9, s25')
    a(f's_mov_b32 s10, {576*1152}')
    a(f's_mul_i32 s{sA}, s{sV}, 57')
    a(f's_lshr_b32 s{sA}, s{sA}, 9')
    a(f's_mul_i32 s{sT0}, s{sA}, 9')
    a(f's_sub_u32 s{sB}, s{sV}, s{sT0}')
    a(f's_movk_i32 s{sIA}, 1152')
    a(f's_mul_i32 s{sSO}, s{sA}, {72*1152}')
    a(f's_cmp_eq_u32 s{sA}, 8')
    a(f's_cselect_b32 s{sIB}, {17*1152}, s{sIA}')
    a(f's_cselect_b32 s{sSO}, {16*1152}, s{sSO}')
    a(f's_cselect_b32 s48, 288, 36') if False else None
    a(f's_movk_i32 s48, 288')
    a(f's_cselect_b32 s48, s48, 36')
    a(f's_movk_i32 s49, 144')
    a(f's_cselect_b32 s49, s49, 18')
    a(f's_movk_i32 s50, 72')
    a(f's_cselect_b32 s50, s50, 8')
    a(f's_lshl_b32 s{sT0}, s{sB}, 7')
    a(f's_add_u32 s{sSO}, s{sSO}, s{sT0}')
    a(f'v_mul_u32_u24 v{vSO}, s48, v{t1}')
    a(f'v_lshrrev_b32 v{t3}, 1, v{t2}')
    a(f'v_mul_u32_u24 v{t3}, s49, v{t3}')
    a(f'v_add_u32 v{vSO}, v{vSO}, v{t3}')
    a(f'v_and_b32 v{t3}, 1, v{t2}')
    a(f'v_mul_u32_u24 v{t3}, s50, v{t3}')
    a(f'v_add_u32 v{vSO}, v{vSO}, v{t3}')
    a(f'v_mul_u32_u24 v{vSO}, 1152, v{vSO}')
    a(f'v_lshl_add_u32 v{vSO}, v{t0}, 4, v{vSO}')
    a(f's_mul_i32 s{sDO}, s{sA}, {2*4608}')
    a(f's_add_u32 s{sDO}, s{sDO}, {hx(WOF)}')
    a(f's_lshl_b32 s{sT0}, s{sB}, 3')
    a(f'v_add_u32 v{t0}, s{sT0}, v{t0}')
    a(f'v_mul_u32_u24 v{t3}, 57, v{t0}')
    a(f'v_lshrrev_b32 v{t3}, 9, v{t3}')
    a(f'v_mul_u32_u24 v{vD1}, 9, v{t3}')
    a(f'v_sub_u32 v{t0}, v{t0}, v{vD1}')
    a(f'v_mul_u32_u24 v{t3}, {WOSL}, v{t3}')
    a(f'v_mul_u32_u24 v{t1}, 4608, v{t1}')
    a(f'v_add_u32 v{t3}, v{t3}, v{t1}')
    a(f'v_lshrrev_b32 v{t1}, 2, v{t0}')
    a(f'v_lshl_add_u32 v{t3}, v{t1}, 11, v{t3}')
    a(f'v_and_b32 v{t1}, 3, v{t0}')
    a(f'v_lshl_add_u32 v{t3}, v{t1}, 6, v{t3}')
    a(f'v_cmp_eq_u32 vcc, 8, v{t0}')
    a(f'v_lshl_add_u32 v{vD0}, v{t2}, 8, v{t3}')
    a(f'v_lshl_add_u32 v{t1}, v{t2}, 7, v{t3}')
    a(f'v_mov_b32 v{t0}, 1024')
    a(f'v_cndmask_b32 v{vD0}, v{vD0}, v{t1}, vcc')
    a(f'v_cndmask_b32 v{t0}, v{t0}, 64, vcc') if False else None
    a(f'v_mov_b32 v{t2}, 64')
    a(f'v_cndmask_b32 v{t0}, v{t0}, v{t2}, vcc')
    a(f'v_add_u32 v{vD1}, v{vD0}, v{t0}')
    a.label('L_k2_sload')
    for e in range(8):
        a(f'buffer_load_dwordx4 {vr(R+4*e,4)}, v{vSO}, {sr(SSRC,4)}, s{sSO} offen')
        if e < 7: a(f's_add_u32 s{sSO}, s{sSO}, s{sIA if e % 2 == 0 else sIB}')
    a(f's_mov_b32 s{sEV}, 8')
    a('s_branch L_k2_loop')
    a.label('L_k2_ev8')
    a(f's_mov_b32 s{sIA}, 0x05040100')
    a(f's_mov_b32 s{sIB}, 0x07060302')
    stamp(a)
    a(f's_waitcnt vmcnt(0)')
    stamp(a)
    for e in range(8):
        t = TR + 4 * (e % 2)
        for q in range(4):
            a(f'v_perm_b32 v{t+q}, v{R+4*(2*q+1)+e//2}, v{R+4*(2*q)+e//2}, s{sIA if e % 2 == 0 else sIB}')
        a(f'buffer_store_dwordx4 {vr(t,4)}, v{vD0 if e < 4 else vD1}, {sr(SWS,4)}, s{sDO} offen offset:{(e&3)*16}')
    a(f's_mov_b32 s{sEV}, 16')
    stamp(a)
    a('s_branch L_k2_loop')
    if 'noside' in OPT:
        del a.out[mark[0]:]; del a.seq[mark[1]:]; a.branches = mark[2]; a.labels = mark[3]; a.hist = []
    a.label('L_k2_fin')
    stamp(a)
    a(f'v_cvt_pk_bf16_f32 v{P+7}, v{S1+14}, v{S1+15}')
    a(f's_waitcnt lgkmcnt(0)')
    a(f'{MF32} {vr(O,16)}, {vr(V1,4)}, {vr(P+4,4)}, {vr(O,16)}')
    a(f'v_lshl_add_u32 v8, v{vHH}, 1, v{vHL}')
    a(f'v_lshl_add_u32 v8, v8, 4, v{vT}')
    a(f'v_lshlrev_b32 v8, 4, v8')
    a(f'v_lshlrev_b32 v9, 4, v{vT}')
    a(f'v_lshl_add_u32 v9, v{vHH}, 2, v9')
    a(f's_lshl_b32 s{sT0}, s{sS}, 10')
    a(f's_add_u32 s{sT0}, s{sT0}, s{sTT}')
    a(f's_add_u32 s{sT0}, s{sT0}, {hx(OOFF)}')
    a(f's_lshr_b32 s{sT1}, s{sS}, 1')
    a(f's_lshl_b32 s{sT1}, s{sT1}, 8')
    a(f's_and_b32 s40, s{sS}, 1')
    a(f's_lshl_b32 s40, s40, 3')
    a(f's_add_u32 s{sT1}, s{sT1}, s40')
    a(f's_add_u32 s{sT1}, s{sT1}, s{sTT}')
    a(f's_add_u32 s{sT1}, s{sT1}, {hx(OOFF + 16*1024)}')
    a(f'v_max3_f32 v10, |v{O}|, |v{O+1}|, |v{O+2}|')
    for r in range(3, 10, 2): a(f'v_max3_f32 v10, v10, |v{O+r}|, |v{O+min(r+1,9)}|')
    a(f'v_add_f32 v11, v{O}, v{O+1}')
    for r in range(2, 10): a(f'v_add_f32 v11, v11, v{O+r}')
    a(f'v_rcp_f32 v15, v{O+10}')
    a(f'v_mov_b32 v{vM}, {hx(f2u(2.0**40))}')
    a(f'v_cmp_nle_f32 vcc, v{O+10}, v{vM}')
    a(f'v_mov_b32 v{vM}, 0x7f000000')
    a(f'v_cmp_nle_f32 s[40:41], v10, v{vM}')
    a(f'v_cmp_u_f32 s[42:43], v11, v11')
    a(f's_or_b64 vcc, vcc, s[40:41]')
    a(f's_or_b64 vcc, vcc, s[42:43]')
    a(f's_cmp_eq_u64 vcc, 0')
    if 'nofb' not in OPT: a(f's_cbranch_scc0 L_k2_fb')
    a.label('L_k2_out')
    for r in range(10): a(f'v_mul_f32 v{O+r}, v{O+r}, v15')
    for k in range(5): a(f'v_cvt_pk_bf16_f32 v{P+k}, v{O+2*k}, v{O+2*k+1}')
    a(f'buffer_store_dwordx4 {vr(P,4)}, v8, {sr(SWS,4)}, s{sT0} offen')
    a('s_mov_b32 exec_hi, 0')
    a(f'buffer_store_dword v{P+4}, v9, {sr(SWS,4)}, s{sT1} offen')
    a('s_branch L_k2_done')
    a.label('L_k2_fb')
    a(f's_cmp_eq_u32 s{sFIN}, 1')
    a(f's_cbranch_scc1 L_k2_out')
    a(f's_mov_b32 s{sFIN}, 1')
    for r in (vAK, vA2, vAV): a(f'v_subrev_u32 v{r}, {16*GRP}, v{r}')
    a(f'v_mov_b32 v{QA}, v{vQ2}'); a(f'v_mov_b32 v{QA+1}, 0')
    a(f'v_mov_b32 v{QB}, 0'); a(f'v_mov_b32 v{QB+1}, v{vQ2}')
    a(f'v_mov_b32 v{vM}, 0xff7fffff')
    a(f'v_mov_b32 v8, v{vAK}'); a(f'v_mov_b32 v9, v{vA2}')
    a(f's_mov_b32 s{sG}, 0')
    a.label('L_k2_fbl')
    a(f'ds_read_b128 {vr(K2,4)}, v9')
    for T in range(4):
        a(f'ds_read_b128 {vr(K16,4)}, v8 offset:{T*1024}')
        a(f's_waitcnt lgkmcnt(0)')
        a(f'{MF32} {vr(S0,16)}, {vr(K16,4)}, {vr(Q,4)}, 0')
        a(f'{MF8} {vr(S0,16)}, {vr(K2+2*(T//2),2)}, {vr(QA if T % 2 == 0 else QB,2)}, {vr(S0,16)}')
        for r in range(0, 16, 2): a(f'v_max3_f32 v{vM}, v{vM}, v{S0+r}, v{S0+r+1}')
    a(f'v_add_u32 v8, {GRP}, v8'); a(f'v_add_u32 v9, {GRP}, v9')
    a(f's_add_u32 s{sG}, s{sG}, 1')
    a(f's_cmp_lg_u32 s{sG}, 16')
    a(f's_cbranch_scc1 L_k2_fbl')
    a(f'ds_read_b128 {vr(K16,4)}, v{vAK}')
    a(f'ds_read_b128 {vr(K2,4)}, v{vA2}')
    a(f's_mov_b32 s{sEV}, 16')
    a(f's_waitcnt lgkmcnt(0)')
    a('s_branch L_k2_setm')
    a.label('L_k2_done')
    end(a, name, 1, SWS)
    if 'w16' in OPT: return dict(name=name, grid=256, block=1024, lds=163840, vgpr=128, acc=128)
    if 'agab' in OPT or 'ago' in OPT: return dict(name=name, grid=256, block=512, lds=163840, vgpr=256, acc=144)
    return dict(name=name, grid=256, block=512, lds=163840, vgpr=144, acc=144)

def k3(a):
    name = 'k3_kernel'
    begin(a, name, 256)
    SX, SWS = 4, 8
    a('s_load_dwordx2 s[4:5], s[0:1], 0')
    a('s_load_dwordx2 s[8:9], s[0:1], 80')
    srd(a, SX, ACT); srd(a, SWS, 0x10000000)
    sTB, sJ, sW, sTT, sT0, sT1, sO = 30, 31, 32, 33, 34, 35, 36
    tbj(a, sTB, sJ, sT0)
    vL, vG, vT, vA, vA4 = 1, 2, 3, 10, 11
    a(f'v_lshrrev_b32 v4, 6, v0')
    a(f'v_and_b32 v{vL}, 63, v0')
    a(f'v_readfirstlane_b32 s{sW}, v4')
    a(f'v_lshlrev_b32 v{vA}, 4, v{vL}')
    a(f's_lshl_b32 s{sTT}, s{sTB}, 2')
    a(f's_add_u32 s{sTT}, s{sTT}, s{sW}')
    a(f's_mul_i32 s{sTT}, s{sTT}, 18432')
    a(f's_add_u32 s{sO}, s{sTT}, {hx(OOFF)}')
    a(f's_lshl_b32 s{sT0}, s{sW}, 10')
    a(f's_mov_b32 m0, s{sT0}')
    a(f's_mul_i32 s{sT1}, s{sJ}, {WOSL}')
    a(f's_add_u32 s{sT1}, s{sT1}, s{sT0}')
    a(f's_add_u32 s{sT1}, s{sT1}, {hx(WOF)}')
    X, WR, ACC, RES = 32, 104, 144, 164
    a('s_waitcnt lgkmcnt(0)')
    order = []
    nd = 0
    for s in range(18):
        a(f'buffer_load_dwordx4 {vr(X+4*s,4)}, v{vA}, {sr(SWS,4)}, s{sO} offen offset:{(s%4)*1024}')
        order.append(('x', s))
        if s % 4 == 3: a(f's_add_u32 s{sO}, s{sO}, 4096')
        while nd < 21 and nd * 4096 < (s + 1) * 4608:
            a(f'buffer_load_dwordx4 v{vA}, {sr(SWS,4)}, s{sT1} offen lds')
            order.append(('w', nd))
            nd += 1
            if nd < 21:
                a(f's_add_u32 m0, m0, 4096')
                a(f's_add_u32 s{sT1}, s{sT1}, 4096')
    assert nd == 21
    a(f'v_lshrrev_b32 v{vG}, 4, v{vL}')
    a(f'v_and_b32 v{vT}, 15, v{vL}')
    a(f'v_mul_u32_u24 v4, 1152, v{vT}')
    a(f'v_lshl_add_u32 v5, v{vG}, 3, v4')
    a(f'v_lshl_add_u32 v4, v{vG}, 4, v4')
    a(f's_mul_i32 s{sT0}, s{sJ}, 144')
    a(f's_add_u32 s{sT0}, s{sT0}, s{sTT}')
    a(f'buffer_load_dwordx4 {vr(RES,4)}, v4, {sr(SX,4)}, s{sT0} offen')
    a(f'buffer_load_dwordx4 {vr(RES+4,4)}, v4, {sr(SX,4)}, s{sT0} offen offset:64')
    a(f'buffer_load_dwordx2 {vr(RES+8,2)}, v5, {sr(SX,4)}, s{sT0} offen offset:128')
    order += [('r', 0)] * 3
    a(f'v_and_b32 v4, 7, v{vL}')
    a(f'v_lshl_add_u32 v4, v{vG}, 3, v4')
    a(f'v_lshlrev_b32 v{vA4}, 4, v4')
    vB, vB4 = 12, 13
    a(f'v_add_u32 v{vB}, {9*4608}, v{vA}')
    a(f'v_add_u32 v{vB4}, {9*4608}, v{vA4}')
    def stage_wait(slast):
        idx = max(i for i, o in enumerate(order) if (o[0] == 'x' and o[1] <= slast) or (o[0] == 'w' and o[1] * 4096 < (slast + 1) * 4608))
        stamp(a)
        a(f's_waitcnt vmcnt({len(order) - 1 - idx})')
        a('s_barrier')
        stamp(a)
    D = 10
    def rd(f):
        s, ct = divmod(f, 5)
        if f == 0: stage_wait(8)
        if f == 45: stage_wait(17)
        ad = (vA if ct < 4 else vA4) if s < 9 else (vB if ct < 4 else vB4)
        a(f'ds_read_b128 {vr(WR+4*(f%D),4)}, v{ad} offset:{(s%9)*4608+ct*1024}')
    for f in range(D): rd(f)
    for f in range(90):
        s, ct = divmod(f, 5)
        a(f's_waitcnt lgkmcnt({min(D - 1, 89 - f)})')
        a(f'{MF16} {vr(ACC+4*ct,4)}, {vr(WR+4*(f%D),4)}, {vr(X+4*s,4)}, {"0" if s == 0 else vr(ACC+4*ct,4)}')
        if f + D < 90: rd(f + D)
    stamp(a)
    a(f's_mul_i32 s{sT0}, s{sJ}, {9*256}')
    a(f's_add_u32 s{sT0}, s{sT0}, s{sTT}')
    a(f's_add_u32 s{sT0}, s{sT0}, {hx(HOFF)}')
    a(f'v_lshlrev_b32 v4, 4, v{vT}')
    a(f'v_lshl_add_u32 v4, v{vG}, 3, v4')
    a('s_waitcnt vmcnt(0)')
    for k in range(10):
        a(f'v_lshlrev_b32 v6, 16, v{RES+k}')
        a(f'v_and_b32 v7, 0xffff0000, v{RES+k}')
        a(f'v_add_f32 v6, v6, v{ACC+2*k}')
        a(f'v_add_f32 v7, v7, v{ACC+2*k+1}')
        a(f'v_cvt_pk_bf16_f32 v{RES+k}, v6, v7')
        if k in (3, 7):
            a(f'buffer_store_dwordx4 {vr(RES+k-3,4)}, v{vA}, {sr(SWS,4)}, s{sT0} offen offset:{(k//4)*1024}')
    a('s_mov_b32 exec_hi, 0')
    a(f'buffer_store_dwordx2 {vr(RES+8,2)}, v4, {sr(SWS,4)}, s{sT0} offen offset:2048')
    end(a, name, 2, SWS)
    return dict(name=name, grid=256, block=256, lds=86016, vgpr=176, acc=176)

def k4(a):
    name = 'k4_kernel'
    begin(a, name, 256)
    SWS = 4
    a('s_load_dwordx2 s[4:5], s[0:1], 80')
    srd(a, SWS, 0x10000000)
    sTB, sJ, sW, sT0, sT1, sH, sP1, sP2, sSG, sW2, sIT, sLO, sHI, sST, sSS = 30, 31, 32, 33, 34, 35, 36, 37, 38, 39, 40, 41, 42, 43, 44
    a(f's_and_b32 s{sJ}, s2, 7')
    a(f's_lshr_b32 s{sTB}, s2, 3')
    vL = 1
    VA = 2
    a(f'v_lshrrev_b32 v8, 6, v0')
    a(f'v_and_b32 v{vL}, 63, v0')
    a(f'v_readfirstlane_b32 s{sW}, v8')
    a(f'v_lshlrev_b32 v{VA}, 4, v{vL}')
    for k in range(1, 5): a(f'v_add_u32 v{VA+k}, {4096*k}, v{VA}')
    XB = 48
    RV = 120
    ACC = 224
    def Breg(b): return vr(4*b, 4, 'a') if b < 54 else vr(XB + 4*(b-54), 4)
    def Rreg(q): return vr(216 + 4*q, 4, 'a') if q < 10 else vr(RV + 4*(q-10), 4)
    C1, PK, TMP, vHW, vHS = 8, 12, 28, 44, 45
    a(f's_lshl_b32 s{sT0}, s{sTB}, 2')
    a(f's_add_u32 s{sT0}, s{sT0}, s{sW}')
    a(f's_mul_i32 s{sH}, s{sT0}, 18432')
    a(f's_add_u32 s{sH}, s{sH}, {hx(HOFF)}')
    a(f's_and_b32 s{sT1}, s{sW}, 1')
    a(f's_mul_i32 s{sT0}, s{sW}, 9')
    a(f's_add_u32 s{sT0}, s{sT0}, s{sT1}')
    a(f's_cmp_eq_u32 s{sT1}, 0')
    a(f's_cselect_b32 s{sSG}, 8, -1')
    a(f's_add_u32 s{sSG}, s{sSG}, s{sT0}')
    sC0, sCS = 45, 46
    a(f's_lshr_b32 s{sC0}, s{sT0}, 1')
    a(f's_lshr_b32 s{sCS}, s{sSG}, 1')
    a(f's_mul_i32 s{sP1}, s{sJ}, 36')
    a(f's_add_u32 s{sSG}, s{sSG}, s{sP1}')
    a(f's_add_u32 s{sP1}, s{sP1}, s{sT0}')
    a(f's_mul_i32 s{sP1}, s{sP1}, 18432')
    a(f's_mul_i32 s{sSG}, s{sSG}, 18432')
    a(f's_add_u32 s{sW2}, s{sP1}, {hx(W2F)}')
    a(f's_add_u32 s{sP1}, s{sP1}, {hx(W1F)}')
    a(f's_add_u32 s{sSG}, s{sSG}, {hx(W1F)}')
    a(f's_add_u32 s{sP2}, s{sP1}, 18432')
    a('s_waitcnt lgkmcnt(0)')
    def ld(dst, s, so):
        return f'buffer_load_dwordx4 {dst}, v{VA + s//4}, {sr(SWS,4)}, s{so} offen offset:{(s%4)*1024}'
    for s in range(18): a(ld(vr(XB+4*s,4), s, sH))
    for s in range(18): a(ld(Rreg(s), s, sP1))
    for s in range(18): a(ld(Rreg(18+s), s, sP2))
    a(f's_add_u32 s{sP2}, s{sP2}, 18432')
    a(f's_mov_b32 s{sLO}, 0x00003f80'); a(f's_mov_b32 s{sHI}, 0x3f800000')
    HB, CB = 73728, 147456
    a(f's_lshl_b32 s{sT0}, s{sW}, 10')
    a(f'v_add_u32 v{vHW}, s{sT0}, v{VA}')
    a(f'v_add_u32 v{vHS}, 36864, v{vHW}')
    def post(s):
        a(f'ds_write_b128 v{vHW if s < 9 else vHS}, {vr(XB+4*s,4)} offset:{(s%9)*4096}')
    stamp(a)
    ln_center(a, XB, ACC, ACC+4, ACC+8, TMP, sLO, sHI, lambda s: (a(f's_waitcnt vmcnt({36 + 17 - s})'), stamp(a) if s == 17 else None), post)
    stamp(a)
    ln_rstd(a, ACC+8, vL, TMP, 48)
    a(f'v_and_b32 v{TMP}, 15, v{vL}')
    a(f'v_lshlrev_b32 v{TMP}, 2, v{TMP}')
    a(f'v_add_u32 v{TMP}, {CB}, v{TMP}')
    a(f's_lshl_b32 s{sT0}, s{sW}, 6')
    a(f'v_mul_f32 v{ACC+8}, {hx(f2u(-LOG2E))}, v{ACC+8}')
    a(f'v_add_u32 v{TMP+1}, s{sT0}, v{TMP}')
    a(f'ds_write_b32 v{TMP+1}, v{ACC+8}')
    a(f's_lshl_b32 s{sT0}, s{sC0}, 12')
    a(f's_add_u32 s{sT0}, s{sT0}, {HB}')
    a(f'v_add_u32 v{vHW}, s{sT0}, v{VA}')
    a(f's_lshl_b32 s{sT0}, s{sCS}, 12')
    a(f's_lshl_b32 s{sT1}, s{sT1}, 3')
    a(f's_add_u32 s{sT0}, s{sT0}, s{sT1}')
    a(f's_add_u32 s{sT0}, s{sT0}, {HB}')
    a(f'v_add_u32 v{vHS}, s{sT0}, v{VA}')
    a(f's_mul_i32 s{sST}, s{sJ}, {ACT}')
    a(f's_mul_i32 s{sT0}, s{sTB}, {4*18432}')
    a(f's_add_u32 s{sST}, s{sST}, s{sT0}')
    a(f's_add_u32 s{sST}, s{sST}, {hx(PART)}')
    a(f's_lshl_b32 s{sT0}, s{sCS}, 10')
    a(f's_add_u32 s{sSS}, s{sST}, s{sT0}')
    a(f's_add_u32 s{sSS}, s{sSS}, s{sT1}')
    a(f's_lshl_b32 s{sT0}, s{sC0}, 10')
    a(f's_add_u32 s{sST}, s{sST}, s{sT0}')
    VS = 220
    VS = 40
    for tt in range(4): a(f'v_add_u32 v{VS+tt}, {tt*18432}, v{VA}')
    vRB, vRB2 = 46, 47
    a('s_waitcnt lgkmcnt(0)')
    a('s_barrier')
    stamp(a)
    for tt in range(4): a(f'ds_read_b32 v{C1+tt}, v{TMP} offset:{64*tt}')

    def silu_ops(acc, half, single=False):
        ops = []
        def stage(i):
            tt, r = divmod(i, 4)
            x = acc + i; t = TMP + (i % 4)
            return [f'v_mul_f32 v{x}, v{x}, v{C1+tt}', f'v_exp_f32 v{t}, v{x}', f'v_add_f32 v{t}, 1.0, v{t}',
                    f'v_rcp_f32 v{t}, v{t}', f'v_mul_f32 v{x}, v{x}, v{t}']
        for i in range(0, 16, 2):
            A, B = stage(i), stage(i + 1)
            for p, q in zip(A, B): ops += [p, q]
            tt = i // 4
            ops.append(f'v_cvt_pk_bf16_f32 v{PK+4*tt+2*half+(i%4)//2}, v{acc+i}, v{acc+i+1}')
            if i % 4 == 2:
                if single: ops.append(f'ds_write_b64 v{vHS}, {vr(PK+4*tt,2)} offset:{tt*1024}')
                elif half == 1: ops.append(f'ds_write_b128 v{vHW}, {vr(PK+4*tt,4)} offset:{tt*1024}')
        return ops
    FL1 = [o[4:].replace('+', ' ') for o in OPT if o.startswith('fl1=')]; FL1 = FL1[0] if FL1 else 'sc1'
    FL2 = [o[4:].replace('+', ' ') for o in OPT if o.startswith('fl2=')]; FL2 = FL2[0] if FL2 else 'sc1'
    def out_ops(acc, half, single=False):
        ops = []
        for tt in range(4):
            for k in range(2):
                ops.append(f'v_cvt_pk_bf16_f32 v{PK+4*tt+2*half+k}, v{acc+4*tt+2*k}, v{acc+4*tt+2*k+1}')
            if single: ops.append(f'buffer_store_dwordx2 {vr(PK+4*tt,2)}, v{VS+tt}, {sr(SWS,4)}, s{sSS} offen {FL2}')
            elif half == 1: ops.append(f'buffer_store_dwordx4 {vr(PK+4*tt,4)}, v{VS+tt}, {sr(SWS,4)}, s{sST} offen {FL1}')
        return ops

    def tile(slot0, acc, so, fill, breads=None, extra_vm=0, fill_start=3):
        if 'k4nofill' in OPT: fill = []
        nf = len(fill); fi = 0
        gaps = 72 - fill_start
        stores_seen = 0
        for s in range(18):
            for tt in range(4):
                g = 4 * s + tt
                if tt == 0 and 'k4nowait' not in OPT:
                    a(f's_waitcnt vmcnt({extra_vm(s, stores_seen)})')
                if breads is not None:
                    a(f's_waitcnt lgkmcnt({min(11, 71 - g)})')
                a(f'{MF16} {vr(acc+4*tt,4)}, {Rreg(slot0+s)}, {Breg(g)}, {"0" if s == 0 else vr(acc+4*tt,4)}')
                if breads is not None and g + 12 < 72: breads(g + 12)
                if tt == 3 and so is not None and 'k4noload' not in OPT: a(ld(Rreg(slot0+s), s if 'k4same' not in OPT else 0, so if 'k4same' not in OPT else sH))
                if g >= fill_start:
                    want = ((g - fill_start + 1) * nf + gaps - 1) // gaps
                    while fi < want:
                        a(fill[fi])
                        if fill[fi].startswith('buffer_store'): stores_seen += 1
                        fi += 1
        assert fi == nf
    def mk_breads(base):
        a(f'v_add_u32 v{vRB}, {base}, v{VA}')
        a(f'v_add_u32 v{vRB2}, {base+36864}, v{VA}')
        def br(b): a(f'ds_read_b128 {Breg(b)}, v{vRB if b < 36 else vRB2} offset:{(b%36)*1024}')
        for b in range(12): br(b)
        return br
    A0, A1 = ACC, ACC + 16
    br = mk_breads(0)
    tile(0, A0, sP2, [], breads=br, extra_vm=lambda s, st: 35)
    a(f's_add_u32 s{sP1}, s{sP2}, 18432')
    a(f's_add_u32 s{sP2}, s{sP1}, 18432')
    a(f's_mov_b32 s{sIT}, 0')
    stamp(a)
    a.raw('.p2align 6')
    a.label('L_k4_g1')
    tile(18, A1, sP1, silu_ops(A0, 0), extra_vm=lambda s, st: 35)
    tile(0, A0, sP2, silu_ops(A1, 1), extra_vm=lambda s, st: 35)
    a(f'v_add_u32 v{vHW}, 4096, v{vHW}')
    a(f's_add_u32 s{sIT}, s{sIT}, 1')
    a(f's_add_u32 s{sP1}, s{sP1}, 36864')
    a(f's_cmp_eq_u32 s{sIT}, 3')
    a(f's_cselect_b32 s{sP1}, s{sW2}, s{sP1}')
    a(f's_add_u32 s{sP2}, s{sP1}, 18432')
    a(f's_cmp_eq_u32 s{sIT}, 2')
    a(f's_cselect_b32 s{sP2}, s{sSG}, s{sP2}')
    a(f's_cmp_lg_u32 s{sIT}, 4')
    a(f's_cbranch_scc1 L_k4_g1')
    stamp(a)
    for op in silu_ops(A0, 0, single=True): a(op)
    a('s_waitcnt lgkmcnt(0)')
    stamp(a)
    a('s_barrier')
    stamp(a)
    br = mk_breads(HB)
    tile(18, A1, sP1, [], breads=br, extra_vm=lambda s, st: 35)
    a(f's_add_u32 s{sP1}, s{sP1}, 18432')
    a(f's_add_u32 s{sP2}, s{sP1}, 18432')
    a(f's_add_u32 s{sSG}, s{sSG}, {hx(W2F - W1F)}')
    a(f's_mov_b32 s{sIT}, 0')
    stamp(a)
    a.raw('.p2align 6')
    a.label('L_k4_g2')
    tile(0, A0, sP1, out_ops(A1, 0), extra_vm=lambda s, st: 35)
    tile(18, A1, sP2, out_ops(A0, 1), extra_vm=lambda s, st: 35 + st)
    a(f's_add_u32 s{sST}, s{sST}, 1024')
    a(f's_add_u32 s{sIT}, s{sIT}, 1')
    a(f's_add_u32 s{sP1}, s{sP1}, 36864')
    a(f's_cmp_eq_u32 s{sIT}, 3')
    a(f's_cselect_b32 s{sP1}, {hx(OOB)}, s{sP1}')
    a(f's_add_u32 s{sP2}, s{sP1}, 18432')
    a(f's_cmp_eq_u32 s{sIT}, 2')
    a(f's_cselect_b32 s{sP2}, s{sSG}, s{sP2}')
    a(f's_cmp_lg_u32 s{sIT}, 4')
    a(f's_cbranch_scc1 L_k4_g2')
    stamp(a)
    for op in out_ops(A1, 0, single=True): a(op)
    end(a, name, 3, SWS)
    return dict(name=name, grid=256, block=256, lds=147712, vgpr=512, acc=256)

def k5(a):
    name = 'k5_kernel'
    begin(a, name, 256)
    SWS, SO = 4, 8
    a('s_load_dwordx2 s[4:5], s[0:1], 80')
    a('s_load_dwordx2 s[8:9], s[0:1], 64')
    srd(a, SWS, 0x10000000); srd(a, SO, ACT)
    sW, sID, sT0, sT1, sLO, sHI = 30, 31, 32, 33, 34, 35
    a(f'v_lshrrev_b32 v4, 6, v0')
    a(f'v_lshlrev_b32 v2, 4, v0')
    a(f'v_readfirstlane_b32 s{sW}, v4')
    a(f's_mul_i32 s{sT0}, s2, {9*1024}')
    a(f's_add_u32 s{sT1}, s{sT0}, {hx(HOFF)}')
    a(f's_add_u32 s{sT0}, s{sT0}, {hx(PART)}')
    a('s_waitcnt lgkmcnt(0)')
    PR, HR, AC = 16, 48, 52
    for p in range(8):
        a(f'buffer_load_dwordx4 {vr(PR+4*p,4)}, v2, {sr(SWS,4)}, s{sT0} offen')
        if p < 7: a(f's_add_u32 s{sT0}, s{sT0}, {ACT}')
    a(f'buffer_load_dwordx4 {vr(HR,4)}, v2, {sr(SWS,4)}, s{sT1} offen')
    a(f's_lshr_b32 s{sT0}, s2, 1')
    a(f's_mul_i32 s{sT0}, s{sT0}, 18432')
    a(f's_and_b32 s{sT1}, s2, 1')
    a(f's_mul_i32 s{sT1}, s{sT1}, 9')
    a(f's_add_u32 s{sT1}, s{sT1}, s{sW}')
    a(f's_lshl_b32 s{sT1}, s{sT1}, 6')
    a(f's_add_u32 s{sT0}, s{sT0}, s{sT1}')
    a(f'v_and_b32 v4, 15, v0')
    a(f'v_bfe_u32 v5, v0, 4, 2')
    a(f'v_mul_u32_u24 v4, 1152, v4')
    a(f'v_lshl_add_u32 v4, v5, 4, v4')
    a(f's_mov_b32 s{sLO}, 0x00003f80'); a(f's_mov_b32 s{sHI}, 0x3f800000')
    for p in range(8):
        a(f's_waitcnt vmcnt({8-p})')
        for r in range(4):
            for h in range(2):
                a(f'v_dot2_f32_bf16 v{AC+2*r+h}, v{PR+4*p+r}, s{sLO+h}, {"0" if p == 0 else "v%d" % (AC+2*r+h)}')
    a('s_waitcnt vmcnt(0)')
    for r in range(4):
        a(f'v_lshlrev_b32 v{8+2*r}, 16, v{HR+r}')
        a(f'v_and_b32 v{9+2*r}, 0xffff0000, v{HR+r}')
    for i in range(8): a(f'v_fmac_f32 v{8+i}, {hx(f2u(-math.log(2.0)))}, v{AC+i}')
    for r in range(4): a(f'v_cvt_pk_bf16_f32 v{HR+r}, v{8+2*r}, v{9+2*r}')
    a(f'buffer_store_dwordx4 {vr(HR,4)}, v4, {sr(SO,4)}, s{sT0} offen')
    if 'xchk' in OPT:
        a('s_lshl_b32 s51, s2, 2'); a('s_add_u32 s51, s51, 0x7000000')
        a('s_and_b32 s52, s51, 0x700001c')
        a('s_buffer_load_dword s53, s[4:7], s51')
        a('s_buffer_load_dword s54, s[4:7], s52')
        a('s_waitcnt lgkmcnt(0)')
        a('s_cmp_eq_u32 s53, s54')
        a('s_cbranch_scc1 L_end_k5_kernel')
        a('s_mov_b32 s55, 10')
        a.label('L_k5_sl')
        a('s_sleep 127')
        a('s_sub_u32 s55, s55, 1')
        a('s_cmp_lg_u32 s55, 0')
        a('s_cbranch_scc1 L_k5_sl')
    end(a, name, 4, SWS)
    return dict(name=name, grid=256, block=576, lds=0, vgpr=64, acc=64)

def build(kernels):
    a = Asm()
    infos = [k(a) for k in kernels]
    hdr = [f'; @launch kernel={i["name"]} grid=({i["grid"]},1,1) block=({i["block"]},1,1) lds={i["lds"]}' for i in infos]
    hdr += ['.amdgcn_target "amdgcn-amd-amdhsa--gfx950"', '.text'] + [f'.globl {i["name"]}' for i in infos]
    tail = ['.section .rodata,"a"']
    for i in infos:
        tail += ['.p2align 6', f'.amdhsa_kernel {i["name"]}', f'  .amdhsa_next_free_vgpr {i["vgpr"]}', '  .amdhsa_next_free_sgpr 102',
                 f'  .amdhsa_accum_offset {i["acc"]}', '  .amdhsa_group_segment_fixed_size 0', '  .amdhsa_kernarg_size 88',
                 '  .amdhsa_user_sgpr_count 2', '  .amdhsa_user_sgpr_kernarg_segment_ptr 1', '  .amdhsa_system_sgpr_workgroup_id_x 1',
                 '.end_amdhsa_kernel']
    print('nops inserted:', a.nops, file=sys.stderr)
    return '\n'.join(hdr) + '\n' + a.text() + '\n'.join(tail) + '\n'

if __name__ == '__main__':
    out = sys.argv[1]
    if len(sys.argv) > 2 and 'stamp' in sys.argv[2:]: STAMP = True
    OPT = set(sys.argv[2:])
    open(out, 'w').write(build([k1, k2, k3, k4, k5]))
```

```python
import sys, math, struct
from asmlib import Asm, vr, sr

NAME = 'sequential_preLN__grouped_kv_mqa__dense_activation_silu__prompt'
QOFF, KVOFF, OOFF, HOFF, WOF, W1F, W2F, PART = 0x0, 0x300000, 0x400000, 0x700000, 0xA00000, 0x1000000, 0x1600000, 0x2000000
ACT = 2048 * 1152
GRP = 9472
VFR = 608
WOSL = 18 * 4608
OOB = 0x40000000
MF16 = 'v_mfma_f32_16x16x32_bf16'
MF32 = 'v_mfma_f32_32x32x16_bf16'
MF8 = 'v_mfma_f32_32x32x8_bf16'
def f2u(x): return struct.unpack('<I', struct.pack('<f', x))[0]
def hx(x): return f'0x{x & 0xffffffff:08x}'
LOG2E = 1.4426950408889634
STAMP = False
OPT = set()

def srd(a, b, n):
    a(f's_mov_b32 s{b+2}, {hx(n)}')
    a(f's_mov_b32 s{b+3}, 0x00020000')

def begin(a, name, nwg):
    a.raw('.p2align 8')
    a.raw(f'.type {name},@function')
    a.raw(f'{name}:')
    a.reset_hist()
    a(f's_cmp_ge_u32 s2, {nwg}')
    a(f's_cbranch_scc1 L_end_{name}')
    global NST
    NST = 0
    if 'dbgt' in OPT:
        a('s_memrealtime s[74:75]')
        a('s_load_dwordx2 s[76:77], s[0:1], 72')
    if STAMP:
        a('s_memtime s[74:75]')
        for i in range(76, 100, 2): a(f's_mov_b32 s{i}, 0')
    stamp(a)

NST = 0
def stamp(a, idx=None):
    global NST
    if idx is None: idx = NST
    NST = idx + 1
    assert idx < 11
    if STAMP: a(f's_{"memtime" if "cyc" in OPT and idx > 0 else "memrealtime"} s[{76+2*idx}:{77+2*idx}]')

def end(a, name, kidx, ws):
    if STAMP:
        a('s_waitcnt vmcnt(0) lgkmcnt(0)')
        a('s_memrealtime s[98:99]')
        a('s_memtime s[72:73]')
        a('s_getreg_b32 s100, hwreg(HW_REG_XCC_ID)')
        a('s_mov_b64 exec, -1')
        a('v_lshrrev_b32 v2, 6, v0')
        a('v_lshlrev_b32 v2, 6, v2')
        a(f's_lshl_b32 s3, s2, 10')
        a(f's_add_u32 s3, s3, {hx(0x8000000 + kidx * 0x80000)}')
        a('s_waitcnt lgkmcnt(0)')
        a('s_sub_u32 s72, s72, s74')
        if 'cyc' in OPT:
            for i in range(1, 11):
                a(f's_cmp_eq_u32 s{76+2*i}, 0')
                a(f's_cselect_b32 s73, 0, s74')
                a(f's_sub_u32 s{76+2*i}, s{76+2*i}, s73')
        for q in range(3):
            for r in range(4): a(f'v_mov_b32 v{4+r}, s{76+8*q+2*r}')
            a(f'buffer_store_dwordx4 v[4:7], v2, {sr(ws,4)}, s3 offen offset:{16*q}')
            a('s_nop 4')
        a('v_mov_b32 v4, s72'); a('v_mov_b32 v5, s100'); a('v_mov_b32 v6, s100'); a('v_mov_b32 v7, s101')
        a(f'buffer_store_dwordx4 v[4:7], v2, {sr(ws,4)}, s3 offen offset:48')
    if 'dbgt' in OPT:
        a('s_waitcnt vmcnt(0) lgkmcnt(0)')
        a('s_memrealtime s[72:73]')
        a(f's_add_u32 s76, s76, {512*(4-kidx)}')
        a('s_addc_u32 s77, s77, 0')
        a('s_mov_b64 exec, -1')
        a('s_nop 4')
        a('v_readfirstlane_b32 s80, v0')
        a('s_nop 4')
        a('s_cmp_lg_u32 s80, 0')
        a(f's_cbranch_scc1 L_end_{name}')
        srd(a, 76, 256)
        a('s_mov_b64 exec, 1')
        a('v_mov_b32 v4, 0')
        a('s_waitcnt lgkmcnt(0)')
        a('s_not_b32 s74, s74')
        a('v_mov_b32 v5, s72')
        a('v_mov_b32 v6, s74')
        a(f'buffer_atomic_umax v5, v4, s[76:79], 0 offen offset:{8*kidx+4}')
        a(f'buffer_atomic_umax v6, v4, s[76:79], 0 offen offset:{8*kidx}')
    a.label(f'L_end_{name}')
    a('s_endpgm')

def tbj(a, stb, sj, st):
    a(f's_and_b32 s{st}, s2, 7')
    a(f's_lshl_b32 s{stb}, s{st}, 2')
    a(f's_lshr_b32 s{st}, s2, 6')
    a(f's_add_u32 s{stb}, s{stb}, s{st}')
    a(f's_bfe_u32 s{sj}, s2, 0x30003')

def ln_center(a, X, vones, vmean, vvar, vt, sc_lo, sc_hi, waits, post=None):
    for r in range(4): a(f'v_mov_b32 v{vones+r}, 0x3f803f80')
    for s in range(18):
        waits(s)
        a(f'{MF16} {vr(vmean,4)}, {vr(vones,4)}, {vr(X+4*s,4)}, {"0" if s == 0 else vr(vmean,4)}')
    a(f'v_mul_f32 v{vmean}, {hx(f2u(-1.0/576))}, v{vmean}')
    def d(r):
        t = vt + 2 * (r % 3)
        a(f'v_dot2_f32_bf16 v{t}, v{X+r}, s{sc_lo}, v{vmean}')
        a(f'v_dot2_f32_bf16 v{t+1}, v{X+r}, s{sc_hi}, v{vmean}')
    def c(r):
        t = vt + 2 * (r % 3)
        a(f'v_cvt_pk_bf16_f32 v{X+r}, v{t}, v{t+1}')
    d(0); d(1)
    for r in range(72):
        if r + 2 < 72: d(r + 2)
        c(r)
        if r % 4 == 0 and r >= 4:
            s = r // 4 - 1
            a(f'{MF16} {vr(vvar,4)}, {vr(X+4*s,4)}, {vr(X+4*s,4)}, {"0" if s == 0 else vr(vvar,4)}')
            if post: post(s)
    a(f'{MF16} {vr(vvar,4)}, {vr(X+68,4)}, {vr(X+68,4)}, {vr(vvar,4)}')
    if post: post(17)

def ln_rstd(a, vvar, vlane, vt, sm):
    a(f's_mov_b32 s{sm}, 0xaaaaaaaa'); a(f's_mov_b32 s{sm+1}, 0xaaaaaaaa')
    a(f's_mov_b32 s{sm+2}, 0xcccccccc'); a(f's_mov_b32 s{sm+3}, 0xcccccccc')
    a(f'v_and_b32 v{vt}, 15, v{vlane}')
    a(f'v_lshrrev_b32 v{vt+1}, 2, v{vt}')
    a(f'v_lshl_add_u32 v{vt}, v{vt+1}, 4, v{vt}')
    a(f'v_lshlrev_b32 v{vt}, 2, v{vt}')
    a(f'v_cndmask_b32 v{vvar}, v{vvar}, v{vvar+1}, {sr(sm,2)}')
    a(f'v_cndmask_b32 v{vvar+2}, v{vvar+2}, v{vvar+3}, {sr(sm,2)}')
    a(f'v_cndmask_b32 v{vvar}, v{vvar}, v{vvar+2}, {sr(sm+2,2)}')
    a(f'ds_bpermute_b32 v{vvar}, v{vt}, v{vvar}')
    a(f'v_mov_b32 v{vt+1}, {hx(f2u(1e-5))}')
    a('s_waitcnt lgkmcnt(0)')
    a(f'v_fmac_f32 v{vt+1}, {hx(f2u(1.0/576))}, v{vvar}')
    a(f'v_rsq_f32 v{vvar}, v{vt+1}')

def k1(a):
    name = 'k1_kernel'
    begin(a, name, 256)
    SX, SWQ, SKV, SWS = 4, 8, 12, 16
    a('s_load_dwordx2 s[4:5], s[0:1], 0')
    a('s_load_dwordx2 s[8:9], s[0:1], 8')
    a('s_load_dwordx4 s[24:27], s[0:1], 16')
    a('s_load_dwordx2 s[16:17], s[0:1], 80')
    srd(a, SX, ACT); srd(a, SWQ, 576 * 1152); srd(a, SKV, 576 * 36); srd(a, SWS, 0x10000000)
    sTB, sJ, sW, sTT, sT0, sT1, sXO = 30, 31, 32, 33, 34, 35, 36
    sM = 40
    sLO, sHI = 46, 47
    tbj(a, sTB, sJ, sT0)
    vL, vG, vT = 1, 2, 3
    a(f'v_lshrrev_b32 v4, 6, v0')
    a(f'v_and_b32 v{vL}, 63, v0')
    a(f'v_readfirstlane_b32 s{sW}, v4')
    a(f'v_lshrrev_b32 v{vG}, 4, v{vL}')
    a(f'v_and_b32 v{vT}, 15, v{vL}')
    vXO = 20
    a(f'v_mul_u32_u24 v{vXO}, 1152, v{vT}')
    a(f'v_lshl_add_u32 v21, v{vG}, 3, v{vXO}')
    a(f'v_lshl_add_u32 v{vXO}, v{vG}, 4, v{vXO}')
    a(f's_lshl_b32 s{sTT}, s{sTB}, 2')
    a(f's_add_u32 s{sTT}, s{sTT}, s{sW}')
    a(f's_mul_i32 s{sXO}, s{sTT}, {16*1152}')
    X = 32
    a('s_waitcnt lgkmcnt(0)')
    for s in range(18):
        a(f'buffer_load_dwordx4 {vr(X+4*s,4)}, v{vXO}, {sr(SX,4)}, s{sXO} offen offset:{64*s}')
    for m in range(5):
        a(f'v_add_u32 v4, {256*m}, v0')
        a(f'v_mul_u32_u24 v5, 6554, v4')
        a(f'v_lshrrev_b32 v5, 16, v5')
        a(f'v_mul_u32_u24 v6, 10, v5')
        a(f'v_sub_u32 v6, v4, v6')
        a(f'v_lshrrev_b32 v7, 1, v5')
        a(f'v_and_b32 v7, 4, v7')
        a(f'v_xor_b32 v5, v5, v7')
        a(f'v_mul_u32_u24 v5, 1152, v5')
        a(f'v_lshl_add_u32 v5, v6, 4, v5')
        a(f'v_cmp_eq_u32 vcc, 9, v6')
        a(f'v_mov_b32 v7, {hx(OOB)}')
        a(f's_add_u32 s{sT0}, s{sW}, {4*m}')
        a(f's_mul_i32 s{sT1}, s{sT0}, 13')
        a(f'v_cndmask_b32 v{10+m}, v5, v7, vcc')
        a(f's_lshr_b32 s{sT1}, s{sT1}, 6')
        a(f's_add_u32 s{sT0}, s{sT0}, s{sT1}')
        a(f's_lshl_b32 s{sM+m}, s{sT0}, 10')
    a(f's_cmp_lt_u32 s{sJ}, 3')
    a(f's_cselect_b32 s12, s24, s26')
    a(f's_cselect_b32 s13, s25, s27')
    a(f's_cselect_b32 s{sT0}, 0, 3')
    a(f's_sub_u32 s{sT0}, s{sJ}, s{sT0}')
    a(f's_lshl_b32 s{sT1}, s{sT0}, 4')
    a(f's_min_u32 s{sT1}, s{sT1}, 20')
    a(f's_mul_i32 s{sT0}, s{sW}, {32*36}')
    sKO = 37
    a(f's_add_u32 s{sKO}, s{sT0}, s{sT1}')
    a(f'v_mul_u32_u24 v15, 36, v{vL}')
    a(f'v_cmp_gt_u32 vcc, 32, v{vL}')
    sWO, sKM = 38, 39
    a(f's_mul_i32 s{sWO}, s{sJ}, 144')
    a(f's_mul_i32 s{sKM}, s{sW}, 6144')
    a(f'v_cndmask_b32 v15, v7, v15, vcc')
    ndma = 0
    for sb in range(5):
        for m in range(5 if sb < 4 else 3):
            a(f's_add_u32 m0, s{sM+m}, {sb*24576}')
            a(f'buffer_load_dwordx4 v{10+m}, {sr(SWQ,4)}, s{sWO} offen lds')
            ndma += 1
        a(f's_add_u32 m0, s{sKM}, {sb*24576+5120}')
        a(f's_add_u32 s{sWO}, s{sWO}, {128*1152}')
        a(f'buffer_load_dwordx4 v15, {sr(SKV,4)}, s{sKO} offen lds')
        a(f's_add_u32 s{sKO}, s{sKO}, {128*36}')
        ndma += 1
    A0, A1, A40, A41 = 16, 17, 18, 19
    a(f'v_bfe_u32 v4, v{vL}, 2, 2')
    a(f'v_lshl_add_u32 v4, v{vG}, 3, v4')
    a(f'v_and_b32 v5, 1, v{vG}')
    a(f'v_lshlrev_b32 v5, 2, v5')
    a(f'v_xor_b32 v6, v4, v5')
    a(f'v_xor_b32 v7, 4, v6')
    a(f'v_and_b32 v5, 3, v{vL}')
    a(f'v_lshlrev_b32 v5, 3, v5')
    a(f'v_mad_u32_u24 v{A0}, v6, 160, v5') if False else None
    a(f'v_mul_u32_u24 v{A0}, 160, v6'); a(f'v_add_u32 v{A0}, v{A0}, v5')
    a(f'v_mul_u32_u24 v{A1}, 160, v7'); a(f'v_add_u32 v{A1}, v{A1}, v5')
    a(f'v_lshl_add_u32 v4, v4, 4, v5')
    a(f'v_add_u32 v4, {5120-16-128}, v4')
    a(f'v_add_u32 v6, 64, v4')
    a(f'v_cmp_gt_u32 vcc, 16, v5')
    a(f's_mov_b32 s{sLO}, 0x00003f80'); a(f's_mov_b32 s{sHI}, 0x3f800000')
    a(f'v_cndmask_b32 v{A40}, v4, v{A0}, vcc')
    a(f'v_cndmask_b32 v{A41}, v6, v{A1}, vcc')
    WR, ACC, MEAN, VAR, ONES, TMP = 104, 132, 152, 156, 160, 22
    stamp(a)
    ln_center(a, X, ONES, MEAN, VAR, TMP, sLO, sHI, lambda s: (a(f's_waitcnt vmcnt({ndma + 17 - s})'), stamp(a) if s == 17 else None))
    stamp(a)
    a('s_waitcnt vmcnt(0)')
    stamp(a)
    a('s_barrier')
    stamp(a)
    D = 7
    def rd(f):
        s, ct = divmod(f, 5)
        if f == 45:
            for r in (A0, A1, A40, A41): a(f'v_add_u32 v{r}, {9*6144}, v{r}')
        off = (s % 9) * 6144 + ct * 32
        r = WR + 4 * (f % D)
        a(f'ds_read_b64_tr_b16 {vr(r,2)}, v{A0 if ct < 4 else A40} offset:{off}')
        a(f'ds_read_b64_tr_b16 {vr(r+2,2)}, v{A1 if ct < 4 else A41} offset:{off}')
    for f in range(D): rd(f)
    for f in range(90):
        s, ct = divmod(f, 5)
        a(f's_waitcnt lgkmcnt({2 * min(D - 1, 89 - f)})')
        a(f'{MF16} {vr(ACC+4*ct,4)}, {vr(WR+4*(f%D),4)}, {vr(X+4*s,4)}, {"0" if s == 0 else vr(ACC+4*ct,4)}')
        if f + D < 90: rd(f + D)
    stamp(a)
    ln_rstd(a, VAR, vL, TMP, 48)
    QS = LOG2E / math.sqrt(18.0)
    a(f'v_cmp_gt_u32 vcc, 32, v{vL}')
    a(f'v_mul_f32 v{VAR+1}, {hx(f2u(QS))}, v{VAR}')
    a(f's_mul_i32 s{sT0}, s{sJ}, 144')
    a(f's_add_u32 s{sXO}, s{sXO}, s{sT0}')
    if QOFF: a(f's_add_u32 s{sXO}, s{sXO}, {hx(QOFF)}')
    a(f'v_cndmask_b32 v{VAR+2}, v{VAR}, v{VAR+1}, vcc')
    for ct in range(5):
        for r in range(4):
            a(f'v_mul_f32 v{ACC+4*ct+r}, v{ACC+4*ct+r}, v{VAR+1 if ct < 4 else VAR+2}')
        a(f'v_cvt_pk_bf16_f32 v{ACC+4*ct}, v{ACC+4*ct}, v{ACC+4*ct+1}')
        a(f'v_cvt_pk_bf16_f32 v{ACC+4*ct+1}, v{ACC+4*ct+2}, v{ACC+4*ct+3}')
        if ct == 4: a('s_mov_b32 exec_hi, 0')
        a(f'buffer_store_dwordx2 {vr(ACC+4*ct,2)}, v21, {sr(SWS,4)}, s{sXO} offen offset:{32*ct}')
    P0, P1 = ACC + 16, ACC + 17
    sGB = 38
    a('s_mov_b64 exec, -1')
    a(f's_lshr_b32 s{sT0}, s{sTT}, 3')
    a(f's_mul_i32 s{sGB}, s{sT0}, {GRP}')
    a(f's_add_u32 s{sGB}, s{sGB}, {hx(KVOFF)}')
    a(f's_cmp_gt_u32 s{sJ}, 2')
    a(f's_cbranch_scc1 L_k1_v')
    a(f's_and_b32 s{sT0}, s{sTT}, 1')
    a(f's_lshl_b32 s{sT0}, s{sT0}, 8')
    a(f's_add_u32 s{sGB}, s{sGB}, s{sT0}')
    a(f's_bfe_u32 s{sT1}, s{sTT}, 0x20001')
    a(f'v_lshlrev_b32 v4, 4, v{vT}')
    a(f's_cmp_eq_u32 s{sJ}, 2')
    a(f's_cbranch_scc1 L_k1_k2')
    a(f's_lshl_b32 s{sT1}, s{sT1}, 10')
    a(f's_lshl_b32 s{sT0}, s{sJ}, 9')
    a(f's_add_u32 s{sGB}, s{sGB}, s{sT1}')
    a(f's_add_u32 s{sGB}, s{sGB}, s{sT0}')
    a(f'v_and_b32 v5, 1, v{vG}')
    a(f'v_lshl_add_u32 v4, v5, 3, v4')
    a('s_mov_b32 exec_lo, 0')
    a(f'buffer_store_dwordx2 {vr(P0,2)}, v4, {sr(SWS,4)}, s{sGB} offen')
    a(f's_branch L_k1_done')
    a.label('L_k1_k2')
    a(f's_lshl_b32 s{sT1}, s{sT1}, 2')
    a(f's_add_u32 s{sGB}, s{sGB}, s{sT1}')
    a(f's_add_u32 s{sGB}, s{sGB}, 4096')
    a('s_mov_b32 exec_lo, 0')
    a('s_mov_b32 exec_hi, 0xffff0000')
    a(f'buffer_store_dword v{P1}, v4, {sr(SWS,4)}, s{sGB} offen')
    a(f's_branch L_k1_done')
    a.label('L_k1_v')
    a(f's_and_b32 s{sT0}, s{sTT}, 7')
    a(f's_mul_i32 s{sT0}, s{sT0}, {VFR}')
    a(f's_add_u32 s{sGB}, s{sGB}, s{sT0}')
    a(f's_add_u32 s{sGB}, s{sGB}, 4608')
    a(f's_cmp_gt_u32 s{sJ}, 5')
    a(f's_cbranch_scc1 L_k1_c')
    a(f'v_bfe_u32 v4, v{vT}, 2, 1')
    a(f'v_mul_u32_u24 v4, 288, v4')
    a(f'v_and_b32 v5, 1, v{vG}')
    a(f'v_lshl_add_u32 v4, v5, 7, v4')
    a(f'v_and_b32 v5, 8, v{vT}')
    a(f'v_add_u32 v4, v4, v5')
    a(f'v_and_b32 v5, 3, v{vT}')
    a(f'v_lshl_add_u32 v4, v5, 1, v4')
    a('s_mov_b32 exec_lo, 0')
    a(f's_cmp_eq_u32 s{sJ}, 5')
    a(f's_cbranch_scc1 L_k1_v2')
    a(f's_sub_u32 s{sT0}, s{sJ}, 3')
    a(f's_lshl_b32 s{sT0}, s{sT0}, 6')
    a(f's_add_u32 s{sGB}, s{sGB}, s{sT0}')
    a(f'buffer_store_short v{P0}, v4, {sr(SWS,4)}, s{sGB} offen')
    a(f'buffer_store_short_d16_hi v{P0}, v4, {sr(SWS,4)}, s{sGB} offen offset:16')
    a(f'buffer_store_short v{P1}, v4, {sr(SWS,4)}, s{sGB} offen offset:32')
    a(f'buffer_store_short_d16_hi v{P1}, v4, {sr(SWS,4)}, s{sGB} offen offset:48')
    a(f's_branch L_k1_done')
    a.label('L_k1_v2')
    a('s_mov_b32 exec_hi, 0xffff0000')
    a(f'buffer_store_short v{P1}, v4, {sr(SWS,4)}, s{sGB} offen offset:128')
    a(f'buffer_store_short_d16_hi v{P1}, v4, {sr(SWS,4)}, s{sGB} offen offset:144')
    a(f's_branch L_k1_done')
    a.label('L_k1_c')
    a(f's_cmp_eq_u32 s{sJ}, 7')
    a(f's_cbranch_scc1 L_k1_done')
    a(f'v_cmp_gt_u32 vcc, 4, v{vL}')
    a(f'v_lshlrev_b32 v4, 2, v{vL}')
    a(f'v_mov_b32 v5, 0')
    a(f'v_cndmask_b32 v5, v5, v{ONES}, vcc')
    a('s_mov_b64 exec, 0xff')
    a(f'buffer_store_dword v5, v4, {sr(SWS,4)}, s{sGB} offen offset:576')
    a.label('L_k1_done')
    if 'xchk' in OPT:
        a('s_getreg_b32 s50, hwreg(HW_REG_XCC_ID)')
        a('s_and_b32 s50, s50, 15')
        a('s_mov_b64 exec, 1')
        a('v_mov_b32 v4, 0'); a('v_mov_b32 v5, s50')
        a('s_lshl_b32 s51, s2, 2'); a('s_add_u32 s51, s51, 0x7000000')
        a(f'buffer_store_dword v5, v4, {sr(SWS,4)}, s51 offen')
    end(a, name, 0, SWS)
    return dict(name=name, grid=256, block=256, lds=122880, vgpr=168, acc=168)

def k2(a):
    name = 'k2_kernel'
    begin(a, name, 256)
    SWS, SSRC = 4, 8
    a('s_load_dwordx2 s[4:5], s[0:1], 80')
    a('s_load_dwordx2 s[24:25], s[0:1], 32')
    a('s_load_dwordx4 s[20:23], s[0:1], 48')
    srd(a, SWS, 0x10000000)
    sTB, sJ, sW, sTT, sS, sT0, sT1, sG, sEV, sFIN = 30, 31, 32, 33, 34, 35, 36, 37, 38, 39
    tbj(a, sTB, sJ, sT0)
    vL = 1
    a(f'v_lshrrev_b32 v4, 6, v0')
    a(f'v_and_b32 v{vL}, 63, v0')
    a(f'v_readfirstlane_b32 s{sW}, v4')
    NG = 8 if 'w16' in OPT else 16
    if 'w16' in OPT: a(f's_and_b32 s{sW}, s{sW}, 7')
    vAK, vA2, vAV = 2, 3, 12
    a(f'v_lshlrev_b32 v{vAK}, 4, v{vL}')
    a(f's_lshl_b32 s{sT0}, s{sW}, 10')
    a(f's_add_u32 s{sT1}, s{sT0}, {hx(KVOFF)}')
    a(f's_mov_b32 m0, s{sT0}')
    a('s_waitcnt lgkmcnt(0)')
    def dma(n):
        a(f'buffer_load_dwordx4 v{vAK}, {sr(SWS,4)}, s{sT1} offen lds')
        if n < 18:
            a(f's_add_u32 m0, m0, 8192')
            a(f's_add_u32 s{sT1}, s{sT1}, 8192')
    dma(0); dma(1)
    S0, S1, O, P, K16, K2, V0, V1, Q, QA, QB = 16, 32, 48, 64, 72, 76, 80, 84, 88, 92, 94
    vT, vHH, vHL = 5, 6, 7
    a(f'v_and_b32 v{vT}, 15, v{vL}')
    a(f'v_bfe_u32 v{vHH}, v{vL}, 4, 1')
    a(f'v_lshrrev_b32 v{vHL}, 5, v{vL}')
    a(f'v_mul_u32_u24 v8, 1152, v{vT}')
    a(f'v_mul_u32_u24 v9, 36, v{vHH}')
    a(f'v_add_u32 v8, v8, v9')
    a(f'v_lshl_add_u32 v8, v{vHL}, 4, v8')
    a(f's_and_b32 s{sTT}, s{sW}, 3')
    a(f's_lshl_b32 s{sTB}, s{sTB}, 2')
    a(f's_add_u32 s{sTT}, s{sTT}, s{sTB}')
    a(f's_lshr_b32 s{sS}, s{sW}, 2')
    a(f's_lshl_b32 s{sT0}, s{sJ}, 1')
    a(f's_add_u32 s{sS}, s{sS}, s{sT0}')
    a(f's_mul_i32 s{sTT}, s{sTT}, 18432')
    a(f's_mul_i32 s{sT0}, s{sS}, 72')
    a(f's_add_u32 s{sT0}, s{sT0}, s{sTT}')
    if QOFF: a(f's_add_u32 s{sT0}, s{sT0}, {hx(QOFF)}')
    vQ2 = 13
    a(f'buffer_load_dwordx4 {vr(Q,4)}, v8, {sr(SWS,4)}, s{sT0} offen')
    a(f'buffer_load_dword v{vQ2}, v8, {sr(SWS,4)}, s{sT0} offen offset:32')
    for n in range(2, 19): dma(n)
    a(f'v_cmp_gt_u32 vcc, 32, v{vL}')
    a(f'v_add_u32 v8, 4096, v{vAK}')
    a(f'v_mov_b32 v9, {4608+576}')
    a(f'v_cndmask_b32 v{vA2}, v9, v8, vcc')
    a(f'v_and_b32 v8, 31, v{vL}')
    a(f'v_mul_u32_u24 v9, 18, v{vHL}')
    a(f'v_add_u32 v9, v9, v8')
    a(f'v_cmp_lt_u32 vcc, 17, v8')
    a(f'v_mov_b32 v10, 37')
    a(f'v_and_b32 v8, 27, v8')
    a(f'v_cndmask_b32 v9, v9, v10, vcc')
    a(f'v_cmp_eq_u32 vcc, 18, v8')
    a(f'v_mov_b32 v10, 36')
    a(f's_mov_b32 s{sEV}, 1')
    a(f's_mov_b32 s{sFIN}, 0')
    if 'noside' not in OPT: a(f'v_mov_b32 v137, {hx(OOB)}'); a(f'v_mov_b32 v138, {hx(OOB)}'); a('s_mov_b32 s47, 0')
    if 'prio' in OPT:
        a(f's_cmp_lt_u32 s{sW}, 4')
        a('s_cbranch_scc1 L_k2_np')
        a('s_setprio 1')
        a.label('L_k2_np')
    a(f'v_cndmask_b32 v9, v9, v10, vcc')
    a(f'v_lshlrev_b32 v{vAV}, 4, v9')
    a(f'v_cmp_gt_u32 vcc, 32, v{vL}')
    stamp(a)
    a(f's_waitcnt vmcnt(17)')
    a(f'v_cndmask_b32 v{vQ2}, 0, v{vQ2}, vcc')
    a(f'v_mov_b32 v{QA+1}, 0')
    a(f'v_mov_b32 v{QA}, v{vQ2}')
    a('s_barrier')
    a(f'ds_read_b128 {vr(K16,4)}, v{vAK}')
    a(f'ds_read_b128 {vr(K2,4)}, v{vA2}')
    a(f's_waitcnt lgkmcnt(0)')
    a(f'{MF32} {vr(S0,16)}, {vr(K16,4)}, {vr(Q,4)}, 0')
    a(f'{MF8} {vr(S0,16)}, {vr(K2,2)}, {vr(QA,2)}, {vr(S0,16)}')
    vM = 14
    a(f'v_max3_f32 v{vM}, v{S0}, v{S0+1}, v{S0+2}')
    for r in range(3, 15, 2): a(f'v_max3_f32 v{vM}, v{vM}, v{S0+r}, v{S0+r+1}')
    a(f'v_max_f32 v{vM}, v{vM}, v{S0+15}')
    a.label('L_k2_setm')
    a(f'v_mov_b32 v8, v{vM}')
    a(f'v_permlane32_swap_b32 v8, v{vM}')
    a(f'v_max_f32 v8, v8, v{vM}')
    a(f'v_mul_f32 v8, -1.0, v8')
    a(f'v_and_b32 v9, 0xffff0000, v8')
    a(f'v_sub_f32 v8, v8, v9')
    a(f'v_and_b32 v10, 0xffff0000, v8')
    a(f'v_sub_f32 v8, v8, v10')
    a(f'v_lshrrev_b32 v9, 16, v9')
    a(f'v_or_b32 v9, v9, v10')
    a(f'v_lshrrev_b32 v8, 16, v8')
    a(f'v_cmp_gt_u32 vcc, 32, v{vL}')
    a(f'ds_read_b128 {vr(V0,4)}, v{vAV} offset:4608')
    for r in range(16): a(f'v_mov_b32 v{O+r}, 0')
    a(f'v_cndmask_b32 v{QA}, v9, v{vQ2}, vcc')
    a(f'v_cndmask_b32 v{QA+1}, v8, v{O}, vcc')
    a(f'v_cndmask_b32 v{QB}, v9, v{O}, vcc')
    a(f'v_cndmask_b32 v{QB+1}, v8, v{vQ2}, vcc')
    for r in (S1+14, S1+15, P+4, P+5, P+6, V1, V1+1, V1+2, V1+3): a(f'v_mov_b32 v{r}, 0')
    a(f'{MF32} {vr(S0,16)}, {vr(K16,4)}, {vr(Q,4)}, 0')
    a(f'{MF8} {vr(S0,16)}, {vr(K2,2)}, {vr(QA,2)}, {vr(S0,16)}')
    a(f'ds_read_b128 {vr(K16,4)}, v{vAK} offset:1024')
    a(f's_mov_b32 s{sG}, 0')
    stamp(a)
    a(f's_waitcnt lgkmcnt(0)')
    a('s_nop 8')
    a.raw('.p2align 6')
    a.label('L_k2_loop')
    a0 = a
    def a(t):
        if 'nods' in OPT and t.startswith('ds_read'): return
        if 'nowt' in OPT and t.startswith('s_waitcnt'): return
        if 'nomf8' in OPT and t.startswith(MF8): return
        if 'nopv' in OPT and t.startswith(f'{MF32} {vr(O,16)}'): return
        if 'noqk' in OPT and t.startswith(MF32) and not t.startswith(f'{MF32} {vr(O,16)}'): return
        if 'nocvt' in OPT and t.startswith('v_cvt'): return
        if t.startswith('v_cvt'):
            o = t.replace(',', '').split()
            if 'csdwa' in OPT: t = f'v_mov_b32_sdwa {o[1]}, {o[2]} dst_sel:WORD_0 dst_unused:UNUSED_PRESERVE src0_sel:WORD_1'
            if 'cmov' in OPT: t = f'v_mov_b32 {o[1]}, {o[2]}'
            if 'cor' in OPT: t = f'v_or_b32 {o[1]}, {o[2]}, {o[3]}'
            if 'cbfi' in OPT: t = f'v_bfi_b32 {o[1]}, {o[2]}, {o[3]}, {o[1]}'
            if 'cadd' in OPT: t = f'v_add_f32 {o[1]}, {o[2]}, {o[3]}'
            if 'corsdwa' in OPT: t = f'v_or_b32_sdwa {o[1]}, {o[2]}, {o[3]} dst_sel:DWORD dst_unused:UNUSED_PAD src0_sel:WORD_1 src1_sel:DWORD'
            if 'calign' in OPT: t = f'v_alignbit_b32 {o[1]}, {o[2]}, {o[3]}, 16'
            if 'cpkmov' in OPT: t = f'v_pack_b32_f16 {o[1]}, {o[2]}, {o[3]} op_sel:[1,1,0]'
        if 'noexp' in OPT and t.startswith('v_exp'): return
        if t.startswith(('v_mfma', 'ds_read')):
            import re
            def f(m):
                lo = int(m.group(1))
                if 'agab' in OPT and lo >= 72: return 'a' + m.group(0)[1:]
                if 'ago' in OPT and lo == O: return 'a' + m.group(0)[1:]
                return m.group(0)
            t = re.sub(r'v\[(\d+):(\d+)\]', f, t)
        a0(t)
    for T in range(4):
        S, Sn = (S0, S1) if T % 2 == 0 else (S1, S0)
        e = lambda r: f'v_exp_f32{"_e64" if "e64" in OPT else ""} v{S+r}, v{S+r}'
        c = lambda k: f'v_cvt_pk_bf16_f32 v{P+k}, v{S+2*k}, v{S+2*k+1}'
        st = [e(0), f'v_cvt_pk_bf16_f32 v{P+7}, v{Sn+14}, v{Sn+15}']
        for k in range(7): st += [e(2*k+1), e(2*k+2), c(k)]
        st.append(e(15))
        if 'lag' in OPT:
            cn = lambda k: f'v_cvt_pk_bf16_f32 v{P+k}, v{Sn+2*k}, v{Sn+2*k+1}'
            st = [e(0), cn(6), e(1), e(2), cn(7)]
            for k in range(6): st += [e(2*k+3), e(2*k+4), c(k)]
            st.append(e(15))
        if 'grp' in OPT:
            cn = lambda k: f'v_cvt_pk_bf16_f32 v{P+k}, v{Sn+2*k}, v{Sn+2*k+1}'
            st = [e(0), cn(6), cn(7), e(1), e(2), e(3), e(4), c(0), c(1), e(5), e(6), e(7), e(8), c(2), c(3), e(9), e(10), e(11), e(12), c(4), c(5), e(13), e(14), e(15)]
        if 'oop' in OPT:
            st = [x.replace('v_exp_f32 v', 'v_exp_f32 v1', 1) if x.startswith('v_exp') and len(x.split()[1]) == 4 and int(x.split()[1][1:-1]) < 44 else x for x in st]
        Tn = (T + 1) % 4
        if 'pp4' in OPT and T in (0, 3): a(f's_setprio {1 if T == 0 else 0}')
        if 'pp2' in OPT and T in (0, 2): a(f's_setprio {1 if T == 0 else 0}')
        for idx, op in enumerate(st):
            a(op)
            if idx == 1:
                a(f's_waitcnt lgkmcnt({3 if T == 3 else 2})')
                a(f'{MF32} {vr(Sn,16)}, {vr(K16,4)}, {vr(Q,4)}, 0')
                a(f'ds_read_b128 {vr(K16,4)}, v{vAK} offset:{(T+2)*1024 if T < 2 else GRP+(T-2)*1024}')
            if idx == 6:
                a(f's_waitcnt lgkmcnt({3 if T == 3 else 2})')
                a(f'{MF32} {vr(O,16)}, {vr(V1,4)}, {vr(P+4,4)}, {vr(O,16)}')
                a(f'ds_read_b128 {vr(V1,4)}, v{vAV} offset:{4608+(2*T+1)*VFR}')
            if idx == 11:
                if T == 3: a(f's_waitcnt lgkmcnt(3)')
                a(f'{MF8} {vr(Sn,16)}, {vr(K2+2*(Tn//2),2)}, {vr(QA if Tn % 2 == 0 else QB,2)}, {vr(Sn,16)}')
                if T == 2: a(f'ds_read_b128 {vr(K2,4)}, v{vA2} offset:{GRP}')
            if idx == 17:
                a(f's_waitcnt lgkmcnt({3 if T == 2 else 2})')
                a(f'{MF32} {vr(O,16)}, {vr(V0,4)}, {vr(P,4)}, {vr(O,16)}')
                a(f'ds_read_b128 {vr(V0,4)}, v{vAV} offset:{4608+(2*T+2)*VFR if T < 3 else GRP+4608}')
                if T == 3:
                    a(f's_add_u32 s{sG}, s{sG}, 1')
                    a(f'v_add_u32 v{vAK}, {GRP}, v{vAK}')
                    a(f'v_add_u32 v{vA2}, {GRP}, v{vA2}')
                    a(f'v_add_u32 v{vAV}, {GRP}, v{vAV}')
                    a(f's_cmp_lg_u32 s{sG}, s{sEV}')
    a = a0
    a(f's_cbranch_scc1 L_k2_loop')
    a(f's_cmp_eq_u32 s{sG}, {NG}')
    a(f's_cbranch_scc1 L_k2_fin')
    a(f's_cmp_eq_u32 s{sG}, 1')
    a(f's_cbranch_scc0 L_k2_ev3')
    stamp(a)
    a(f's_waitcnt vmcnt(13)')
    a('s_barrier')
    stamp(a)
    a(f's_mov_b32 s{sEV}, 3')
    a('s_branch L_k2_loop')
    a.label('L_k2_ev3')
    a(f's_cmp_eq_u32 s{sG}, 3')
    a(f's_cbranch_scc0 L_k2_ev8')
    stamp(a)
    a(f's_waitcnt vmcnt(0)')
    a('s_barrier')
    stamp(a)
    sV, sX8, sA, sB, sSO, sIA, sIB, sDO = 40, 41, 42, 43, 44, 45, 46, 47
    R, TR, vSO, vD0, vD1 = 96, 128, 136, 137, 138
    t0, t1, t2, t3 = 140, 141, 142, 143
    a(f's_mov_b32 s{sEV}, {NG}')
    if 'noside' in OPT:
        a('s_branch L_k2_loop')
        a.label('L_k2_ev8')
        a('s_branch L_k2_loop')
        mark = (len(a.out), len(a.seq), list(a.branches), dict(a.labels))
    a(f's_lshl_b32 s{sV}, s{sW}, 5')
    a(f's_lshr_b32 s{sT0}, s2, 3')
    a(f's_add_u32 s{sV}, s{sV}, s{sT0}')
    a(f's_and_b32 s{sX8}, s2, 7')
    a(f's_mov_b32 s11, 0x00020000')
    a(f'v_and_b32 v{t0}, 7, v{vL}')
    a(f'v_bfe_u32 v{t1}, v{vL}, 3, 1')
    a(f'v_lshrrev_b32 v{t2}, 4, v{vL}')
    a(f's_cmp_ge_u32 s{sV}, 162')
    a(f's_cbranch_scc1 L_k2_wo')
    a(f's_cmp_ge_u32 s{sV}, 81')
    a(f's_cselect_b32 s8, s22, s20')
    a(f's_cselect_b32 s9, s23, s21')
    a(f's_mov_b32 s10, {576*4608*2}')
    a(f's_cselect_b32 s{sT0}, 81, 0')
    a(f's_cselect_b32 s{sIA}, 1152, 9216') if False else None
    a(f's_movk_i32 s{sIB}, 0x2400')
    a(f's_cselect_b32 s{sIA}, 1152, s{sIB}')
    a(f's_mov_b32 s{sIB}, {hx(W1F)}')
    a(f's_cselect_b32 s{sDO}, {hx(W2F)}, s{sIB}')
    a(f's_movk_i32 s{sIB}, 1152')
    a(f's_cselect_b32 s{sT1}, {576*1152}, s{sIB}')
    a(f's_sub_u32 s{sV}, s{sV}, s{sT0}')
    a(f's_mul_i32 s{sA}, s{sV}, 57')
    a(f's_lshr_b32 s{sA}, s{sA}, 9')
    a(f's_mul_i32 s{sT0}, s{sA}, 9')
    a(f's_sub_u32 s{sB}, s{sV}, s{sT0}')
    a(f's_mul_i32 s{sSO}, s{sX8}, s{sT1}')
    a(f's_lshl_b32 s{sT0}, s{sA}, 7')
    a(f's_add_u32 s{sSO}, s{sSO}, s{sT0}')
    a(f's_mul_i32 s{sT0}, s{sB}, s{sIA}')
    a(f's_lshl_b32 s{sT0}, s{sT0}, 6')
    a(f's_add_u32 s{sSO}, s{sSO}, s{sT0}')
    a(f's_mov_b32 s{sIB}, s{sIA}')
    a(f's_mul_i32 s{sT0}, s{sX8}, 9')
    a(f's_add_u32 s{sT0}, s{sT0}, s{sA}')
    a(f's_mul_i32 s{sT0}, s{sT0}, 36')
    a(f's_add_u32 s{sT0}, s{sT0}, s{sB}')
    a(f's_lshl_b32 s{sT0}, s{sT0}, 11')
    a(f's_add_u32 s{sDO}, s{sDO}, s{sT0}')
    a(f'v_lshl_add_u32 v{t3}, v{t1}, 2, v{t2}')
    a(f'v_lshlrev_b32 v{t3}, 3, v{t3}')
    a(f'v_mul_u32_u24 v{vSO}, s{sIA}, v{t3}')
    a(f'v_lshl_add_u32 v{vSO}, v{t0}, 4, v{vSO}')
    a(f'v_lshrrev_b32 v{t3}, 2, v{t0}')
    a(f'v_mul_u32_u24 v{t3}, 36, v{t3}')
    a(f'v_add_u32 v{t3}, v{t3}, v{t1}')
    a(f'v_lshlrev_b32 v{vD0}, 10, v{t3}')
    a(f'v_lshl_add_u32 v{vD0}, v{t2}, 8, v{vD0}')
    a(f'v_and_b32 v{t3}, 3, v{t0}')
    a(f'v_lshl_add_u32 v{vD0}, v{t3}, 6, v{vD0}')
    a(f'v_add_u32 v{vD1}, 18432, v{vD0}')
    a(f's_branch L_k2_sload')
    a.label('L_k2_wo')
    a(f's_sub_u32 s{sV}, s{sV}, 162')
    a(f's_lshl_b32 s{sV}, s{sV}, 3')
    a(f's_add_u32 s{sV}, s{sV}, s{sX8}')
    a(f's_cmp_ge_u32 s{sV}, 81')
    a(f's_cbranch_scc1 L_k2_loop')
    a(f's_mov_b32 s8, s24')
    a(f's_mov_b32 s9, s25')
    a(f's_mov_b32 s10, {576*1152}')
    a(f's_mul_i32 s{sA}, s{sV}, 57')
    a(f's_lshr_b32 s{sA}, s{sA}, 9')
    a(f's_mul_i32 s{sT0}, s{sA}, 9')
    a(f's_sub_u32 s{sB}, s{sV}, s{sT0}')
    a(f's_movk_i32 s{sIA}, 1152')
    a(f's_mul_i32 s{sSO}, s{sA}, {72*1152}')
    a(f's_cmp_eq_u32 s{sA}, 8')
    a(f's_cselect_b32 s{sIB}, {17*1152}, s{sIA}')
    a(f's_cselect_b32 s{sSO}, {16*1152}, s{sSO}')
    a(f's_cselect_b32 s48, 288, 36') if False else None
    a(f's_movk_i32 s48, 288')
    a(f's_cselect_b32 s48, s48, 36')
    a(f's_movk_i32 s49, 144')
    a(f's_cselect_b32 s49, s49, 18')
    a(f's_movk_i32 s50, 72')
    a(f's_cselect_b32 s50, s50, 8')
    a(f's_lshl_b32 s{sT0}, s{sB}, 7')
    a(f's_add_u32 s{sSO}, s{sSO}, s{sT0}')
    a(f'v_mul_u32_u24 v{vSO}, s48, v{t1}')
    a(f'v_lshrrev_b32 v{t3}, 1, v{t2}')
    a(f'v_mul_u32_u24 v{t3}, s49, v{t3}')
    a(f'v_add_u32 v{vSO}, v{vSO}, v{t3}')
    a(f'v_and_b32 v{t3}, 1, v{t2}')
    a(f'v_mul_u32_u24 v{t3}, s50, v{t3}')
    a(f'v_add_u32 v{vSO}, v{vSO}, v{t3}')
    a(f'v_mul_u32_u24 v{vSO}, 1152, v{vSO}')
    a(f'v_lshl_add_u32 v{vSO}, v{t0}, 4, v{vSO}')
    a(f's_mul_i32 s{sDO}, s{sA}, {2*4608}')
    a(f's_add_u32 s{sDO}, s{sDO}, {hx(WOF)}')
    a(f's_lshl_b32 s{sT0}, s{sB}, 3')
    a(f'v_add_u32 v{t0}, s{sT0}, v{t0}')
    a(f'v_mul_u32_u24 v{t3}, 57, v{t0}')
    a(f'v_lshrrev_b32 v{t3}, 9, v{t3}')
    a(f'v_mul_u32_u24 v{vD1}, 9, v{t3}')
    a(f'v_sub_u32 v{t0}, v{t0}, v{vD1}')
    a(f'v_mul_u32_u24 v{t3}, {WOSL}, v{t3}')
    a(f'v_mul_u32_u24 v{t1}, 4608, v{t1}')
    a(f'v_add_u32 v{t3}, v{t3}, v{t1}')
    a(f'v_lshrrev_b32 v{t1}, 2, v{t0}')
    a(f'v_lshl_add_u32 v{t3}, v{t1}, 11, v{t3}')
    a(f'v_and_b32 v{t1}, 3, v{t0}')
    a(f'v_lshl_add_u32 v{t3}, v{t1}, 6, v{t3}')
    a(f'v_cmp_eq_u32 vcc, 8, v{t0}')
    a(f'v_lshl_add_u32 v{vD0}, v{t2}, 8, v{t3}')
    a(f'v_lshl_add_u32 v{t1}, v{t2}, 7, v{t3}')
    a(f'v_mov_b32 v{t0}, 1024')
    a(f'v_cndmask_b32 v{vD0}, v{vD0}, v{t1}, vcc')
    a(f'v_cndmask_b32 v{t0}, v{t0}, 64, vcc') if False else None
    a(f'v_mov_b32 v{t2}, 64')
    a(f'v_cndmask_b32 v{t0}, v{t0}, v{t2}, vcc')
    a(f'v_add_u32 v{vD1}, v{vD0}, v{t0}')
    a.label('L_k2_sload')
    for e in range(8):
        a(f'buffer_load_dwordx4 {vr(R+4*e,4)}, v{vSO}, {sr(SSRC,4)}, s{sSO} offen')
        if e < 7: a(f's_add_u32 s{sSO}, s{sSO}, s{sIA if e % 2 == 0 else sIB}')
    a(f's_mov_b32 s{sEV}, 8')
    a('s_branch L_k2_loop')
    a.label('L_k2_ev8')
    a(f's_mov_b32 s{sIA}, 0x05040100')
    a(f's_mov_b32 s{sIB}, 0x07060302')
    stamp(a)
    a(f's_waitcnt vmcnt(0)')
    stamp(a)
    for e in range(8):
        t = TR + 4 * (e % 2)
        for q in range(4):
            a(f'v_perm_b32 v{t+q}, v{R+4*(2*q+1)+e//2}, v{R+4*(2*q)+e//2}, s{sIA if e % 2 == 0 else sIB}')
        a(f'buffer_store_dwordx4 {vr(t,4)}, v{vD0 if e < 4 else vD1}, {sr(SWS,4)}, s{sDO} offen offset:{(e&3)*16}')
    a(f's_mov_b32 s{sEV}, 16')
    stamp(a)
    a('s_branch L_k2_loop')
    if 'noside' in OPT:
        del a.out[mark[0]:]; del a.seq[mark[1]:]; a.branches = mark[2]; a.labels = mark[3]; a.hist = []
    a.label('L_k2_fin')
    stamp(a)
    a(f'v_cvt_pk_bf16_f32 v{P+7}, v{S1+14}, v{S1+15}')
    a(f's_waitcnt lgkmcnt(0)')
    a(f'{MF32} {vr(O,16)}, {vr(V1,4)}, {vr(P+4,4)}, {vr(O,16)}')
    a(f'v_lshl_add_u32 v8, v{vHH}, 1, v{vHL}')
    a(f'v_lshl_add_u32 v8, v8, 4, v{vT}')
    a(f'v_lshlrev_b32 v8, 4, v8')
    a(f'v_lshlrev_b32 v9, 4, v{vT}')
    a(f'v_lshl_add_u32 v9, v{vHH}, 2, v9')
    a(f's_lshl_b32 s{sT0}, s{sS}, 10')
    a(f's_add_u32 s{sT0}, s{sT0}, s{sTT}')
    a(f's_add_u32 s{sT0}, s{sT0}, {hx(OOFF)}')
    a(f's_lshr_b32 s{sT1}, s{sS}, 1')
    a(f's_lshl_b32 s{sT1}, s{sT1}, 8')
    a(f's_and_b32 s40, s{sS}, 1')
    a(f's_lshl_b32 s40, s40, 3')
    a(f's_add_u32 s{sT1}, s{sT1}, s40')
    a(f's_add_u32 s{sT1}, s{sT1}, s{sTT}')
    a(f's_add_u32 s{sT1}, s{sT1}, {hx(OOFF + 16*1024)}')
    a(f'v_max3_f32 v10, |v{O}|, |v{O+1}|, |v{O+2}|')
    for r in range(3, 10, 2): a(f'v_max3_f32 v10, v10, |v{O+r}|, |v{O+min(r+1,9)}|')
    a(f'v_add_f32 v11, v{O}, v{O+1}')
    for r in range(2, 10): a(f'v_add_f32 v11, v11, v{O+r}')
    a(f'v_rcp_f32 v15, v{O+10}')
    a(f'v_mov_b32 v{vM}, {hx(f2u(2.0**40))}')
    a(f'v_cmp_nle_f32 vcc, v{O+10}, v{vM}')
    a(f'v_mov_b32 v{vM}, 0x7f000000')
    a(f'v_cmp_nle_f32 s[40:41], v10, v{vM}')
    a(f'v_cmp_u_f32 s[42:43], v11, v11')
    a(f's_or_b64 vcc, vcc, s[40:41]')
    a(f's_or_b64 vcc, vcc, s[42:43]')
    a(f's_cmp_eq_u64 vcc, 0')
    if 'nofb' not in OPT: a(f's_cbranch_scc0 L_k2_fb')
    a.label('L_k2_out')
    for r in range(10): a(f'v_mul_f32 v{O+r}, v{O+r}, v15')
    for k in range(5): a(f'v_cvt_pk_bf16_f32 v{P+k}, v{O+2*k}, v{O+2*k+1}')
    a(f'buffer_store_dwordx4 {vr(P,4)}, v8, {sr(SWS,4)}, s{sT0} offen')
    a('s_mov_b32 exec_hi, 0')
    a(f'buffer_store_dword v{P+4}, v9, {sr(SWS,4)}, s{sT1} offen')
    a('s_branch L_k2_done')
    a.label('L_k2_fb')
    a(f's_cmp_eq_u32 s{sFIN}, 1')
    a(f's_cbranch_scc1 L_k2_out')
    a(f's_mov_b32 s{sFIN}, 1')
    for r in (vAK, vA2, vAV): a(f'v_subrev_u32 v{r}, {16*GRP}, v{r}')
    a(f'v_mov_b32 v{QA}, v{vQ2}'); a(f'v_mov_b32 v{QA+1}, 0')
    a(f'v_mov_b32 v{QB}, 0'); a(f'v_mov_b32 v{QB+1}, v{vQ2}')
    a(f'v_mov_b32 v{vM}, 0xff7fffff')
    a(f'v_mov_b32 v8, v{vAK}'); a(f'v_mov_b32 v9, v{vA2}')
    a(f's_mov_b32 s{sG}, 0')
    a.label('L_k2_fbl')
    a(f'ds_read_b128 {vr(K2,4)}, v9')
    for T in range(4):
        a(f'ds_read_b128 {vr(K16,4)}, v8 offset:{T*1024}')
        a(f's_waitcnt lgkmcnt(0)')
        a(f'{MF32} {vr(S0,16)}, {vr(K16,4)}, {vr(Q,4)}, 0')
        a(f'{MF8} {vr(S0,16)}, {vr(K2+2*(T//2),2)}, {vr(QA if T % 2 == 0 else QB,2)}, {vr(S0,16)}')
        for r in range(0, 16, 2): a(f'v_max3_f32 v{vM}, v{vM}, v{S0+r}, v{S0+r+1}')
    a(f'v_add_u32 v8, {GRP}, v8'); a(f'v_add_u32 v9, {GRP}, v9')
    a(f's_add_u32 s{sG}, s{sG}, 1')
    a(f's_cmp_lg_u32 s{sG}, 16')
    a(f's_cbranch_scc1 L_k2_fbl')
    a(f'ds_read_b128 {vr(K16,4)}, v{vAK}')
    a(f'ds_read_b128 {vr(K2,4)}, v{vA2}')
    a(f's_mov_b32 s{sEV}, 16')
    a(f's_waitcnt lgkmcnt(0)')
    a('s_branch L_k2_setm')
    a.label('L_k2_done')
    end(a, name, 1, SWS)
    if 'w16' in OPT: return dict(name=name, grid=256, block=1024, lds=163840, vgpr=128, acc=128)
    if 'agab' in OPT or 'ago' in OPT: return dict(name=name, grid=256, block=512, lds=163840, vgpr=256, acc=144)
    return dict(name=name, grid=256, block=512, lds=163840, vgpr=144, acc=144)

def k3(a):
    name = 'k3_kernel'
    begin(a, name, 256)
    SX, SWS = 4, 8
    a('s_load_dwordx2 s[4:5], s[0:1], 0')
    a('s_load_dwordx2 s[8:9], s[0:1], 80')
    srd(a, SX, ACT); srd(a, SWS, 0x10000000)
    sTB, sJ, sW, sTT, sT0, sT1, sO = 30, 31, 32, 33, 34, 35, 36
    tbj(a, sTB, sJ, sT0)
    vL, vG, vT, vA, vA4 = 1, 2, 3, 10, 11
    a(f'v_lshrrev_b32 v4, 6, v0')
    a(f'v_and_b32 v{vL}, 63, v0')
    a(f'v_readfirstlane_b32 s{sW}, v4')
    a(f'v_lshlrev_b32 v{vA}, 4, v{vL}')
    a(f's_lshl_b32 s{sTT}, s{sTB}, 2')
    a(f's_add_u32 s{sTT}, s{sTT}, s{sW}')
    a(f's_mul_i32 s{sTT}, s{sTT}, 18432')
    a(f's_add_u32 s{sO}, s{sTT}, {hx(OOFF)}')
    a(f's_lshl_b32 s{sT0}, s{sW}, 10')
    a(f's_mov_b32 m0, s{sT0}')
    a(f's_mul_i32 s{sT1}, s{sJ}, {WOSL}')
    a(f's_add_u32 s{sT1}, s{sT1}, s{sT0}')
    a(f's_add_u32 s{sT1}, s{sT1}, {hx(WOF)}')
    X, WR, ACC, RES = 32, 104, 144, 164
    a('s_waitcnt lgkmcnt(0)')
    order = []
    nd = 0
    for s in range(18):
        a(f'buffer_load_dwordx4 {vr(X+4*s,4)}, v{vA}, {sr(SWS,4)}, s{sO} offen offset:{(s%4)*1024}')
        order.append(('x', s))
        if s % 4 == 3: a(f's_add_u32 s{sO}, s{sO}, 4096')
        while nd < 21 and nd * 4096 < (s + 1) * 4608:
            a(f'buffer_load_dwordx4 v{vA}, {sr(SWS,4)}, s{sT1} offen lds')
            order.append(('w', nd))
            nd += 1
            if nd < 21:
                a(f's_add_u32 m0, m0, 4096')
                a(f's_add_u32 s{sT1}, s{sT1}, 4096')
    assert nd == 21
    a(f'v_lshrrev_b32 v{vG}, 4, v{vL}')
    a(f'v_and_b32 v{vT}, 15, v{vL}')
    a(f'v_mul_u32_u24 v4, 1152, v{vT}')
    a(f'v_lshl_add_u32 v5, v{vG}, 3, v4')
    a(f'v_lshl_add_u32 v4, v{vG}, 4, v4')
    a(f's_mul_i32 s{sT0}, s{sJ}, 144')
    a(f's_add_u32 s{sT0}, s{sT0}, s{sTT}')
    a(f'buffer_load_dwordx4 {vr(RES,4)}, v4, {sr(SX,4)}, s{sT0} offen')
    a(f'buffer_load_dwordx4 {vr(RES+4,4)}, v4, {sr(SX,4)}, s{sT0} offen offset:64')
    a(f'buffer_load_dwordx2 {vr(RES+8,2)}, v5, {sr(SX,4)}, s{sT0} offen offset:128')
    order += [('r', 0)] * 3
    a(f'v_and_b32 v4, 7, v{vL}')
    a(f'v_lshl_add_u32 v4, v{vG}, 3, v4')
    a(f'v_lshlrev_b32 v{vA4}, 4, v4')
    vB, vB4 = 12, 13
    a(f'v_add_u32 v{vB}, {9*4608}, v{vA}')
    a(f'v_add_u32 v{vB4}, {9*4608}, v{vA4}')
    def stage_wait(slast):
        idx = max(i for i, o in enumerate(order) if (o[0] == 'x' and o[1] <= slast) or (o[0] == 'w' and o[1] * 4096 < (slast + 1) * 4608))
        stamp(a)
        a(f's_waitcnt vmcnt({len(order) - 1 - idx})')
        a('s_barrier')
        stamp(a)
    D = 10
    def rd(f):
        s, ct = divmod(f, 5)
        if f == 0: stage_wait(8)
        if f == 45: stage_wait(17)
        ad = (vA if ct < 4 else vA4) if s < 9 else (vB if ct < 4 else vB4)
        a(f'ds_read_b128 {vr(WR+4*(f%D),4)}, v{ad} offset:{(s%9)*4608+ct*1024}')
    for f in range(D): rd(f)
    for f in range(90):
        s, ct = divmod(f, 5)
        a(f's_waitcnt lgkmcnt({min(D - 1, 89 - f)})')
        a(f'{MF16} {vr(ACC+4*ct,4)}, {vr(WR+4*(f%D),4)}, {vr(X+4*s,4)}, {"0" if s == 0 else vr(ACC+4*ct,4)}')
        if f + D < 90: rd(f + D)
    stamp(a)
    a(f's_mul_i32 s{sT0}, s{sJ}, {9*256}')
    a(f's_add_u32 s{sT0}, s{sT0}, s{sTT}')
    a(f's_add_u32 s{sT0}, s{sT0}, {hx(HOFF)}')
    a(f'v_lshlrev_b32 v4, 4, v{vT}')
    a(f'v_lshl_add_u32 v4, v{vG}, 3, v4')
    a('s_waitcnt vmcnt(0)')
    for k in range(10):
        a(f'v_lshlrev_b32 v6, 16, v{RES+k}')
        a(f'v_and_b32 v7, 0xffff0000, v{RES+k}')
        a(f'v_add_f32 v6, v6, v{ACC+2*k}')
        a(f'v_add_f32 v7, v7, v{ACC+2*k+1}')
        a(f'v_cvt_pk_bf16_f32 v{RES+k}, v6, v7')
        if k in (3, 7):
            a(f'buffer_store_dwordx4 {vr(RES+k-3,4)}, v{vA}, {sr(SWS,4)}, s{sT0} offen offset:{(k//4)*1024}')
    a('s_mov_b32 exec_hi, 0')
    a(f'buffer_store_dwordx2 {vr(RES+8,2)}, v4, {sr(SWS,4)}, s{sT0} offen offset:2048')
    end(a, name, 2, SWS)
    return dict(name=name, grid=256, block=256, lds=86016, vgpr=176, acc=176)

def k4(a):
    name = 'k4_kernel'
    begin(a, name, 256)
    SWS = 4
    a('s_load_dwordx2 s[4:5], s[0:1], 80')
    srd(a, SWS, 0x10000000)
    sTB, sJ, sW, sT0, sT1, sH, sP1, sP2, sSG, sW2, sIT, sLO, sHI, sST, sSS = 30, 31, 32, 33, 34, 35, 36, 37, 38, 39, 40, 41, 42, 43, 44
    a(f's_and_b32 s{sJ}, s2, 7')
    a(f's_lshr_b32 s{sTB}, s2, 3')
    vL = 1
    VA = 2
    a(f'v_lshrrev_b32 v8, 6, v0')
    a(f'v_and_b32 v{vL}, 63, v0')
    a(f'v_readfirstlane_b32 s{sW}, v8')
    a(f'v_lshlrev_b32 v{VA}, 4, v{vL}')
    for k in range(1, 5): a(f'v_add_u32 v{VA+k}, {4096*k}, v{VA}')
    XB = 48
    RV = 120
    ACC = 224
    def Breg(b): return vr(4*b, 4, 'a') if b < 54 else vr(XB + 4*(b-54), 4)
    def Rreg(q): return vr(216 + 4*q, 4, 'a') if q < 10 else vr(RV + 4*(q-10), 4)
    C1, PK, TMP, vHW, vHS = 8, 12, 28, 44, 45
    a(f's_lshl_b32 s{sT0}, s{sTB}, 2')
    a(f's_add_u32 s{sT0}, s{sT0}, s{sW}')
    a(f's_mul_i32 s{sH}, s{sT0}, 18432')
    a(f's_add_u32 s{sH}, s{sH}, {hx(HOFF)}')
    a(f's_and_b32 s{sT1}, s{sW}, 1')
    a(f's_mul_i32 s{sT0}, s{sW}, 9')
    a(f's_add_u32 s{sT0}, s{sT0}, s{sT1}')
    a(f's_cmp_eq_u32 s{sT1}, 0')
    a(f's_cselect_b32 s{sSG}, 8, -1')
    a(f's_add_u32 s{sSG}, s{sSG}, s{sT0}')
    sC0, sCS = 45, 46
    a(f's_lshr_b32 s{sC0}, s{sT0}, 1')
    a(f's_lshr_b32 s{sCS}, s{sSG}, 1')
    a(f's_mul_i32 s{sP1}, s{sJ}, 36')
    a(f's_add_u32 s{sSG}, s{sSG}, s{sP1}')
    a(f's_add_u32 s{sP1}, s{sP1}, s{sT0}')
    a(f's_mul_i32 s{sP1}, s{sP1}, 18432')
    a(f's_mul_i32 s{sSG}, s{sSG}, 18432')
    a(f's_add_u32 s{sW2}, s{sP1}, {hx(W2F)}')
    a(f's_add_u32 s{sP1}, s{sP1}, {hx(W1F)}')
    a(f's_add_u32 s{sSG}, s{sSG}, {hx(W1F)}')
    a(f's_add_u32 s{sP2}, s{sP1}, 18432')
    a('s_waitcnt lgkmcnt(0)')
    def ld(dst, s, so):
        return f'buffer_load_dwordx4 {dst}, v{VA + s//4}, {sr(SWS,4)}, s{so} offen offset:{(s%4)*1024}'
    for s in range(18): a(ld(vr(XB+4*s,4), s, sH))
    for s in range(18): a(ld(Rreg(s), s, sP1))
    for s in range(18): a(ld(Rreg(18+s), s, sP2))
    a(f's_add_u32 s{sP2}, s{sP2}, 18432')
    a(f's_mov_b32 s{sLO}, 0x00003f80'); a(f's_mov_b32 s{sHI}, 0x3f800000')
    HB, CB = 73728, 147456
    a(f's_lshl_b32 s{sT0}, s{sW}, 10')
    a(f'v_add_u32 v{vHW}, s{sT0}, v{VA}')
    a(f'v_add_u32 v{vHS}, 36864, v{vHW}')
    def post(s):
        a(f'ds_write_b128 v{vHW if s < 9 else vHS}, {vr(XB+4*s,4)} offset:{(s%9)*4096}')
    stamp(a)
    ln_center(a, XB, ACC, ACC+4, ACC+8, TMP, sLO, sHI, lambda s: (a(f's_waitcnt vmcnt({36 + 17 - s})'), stamp(a) if s == 17 else None), post)
    stamp(a)
    ln_rstd(a, ACC+8, vL, TMP, 48)
    a(f'v_and_b32 v{TMP}, 15, v{vL}')
    a(f'v_lshlrev_b32 v{TMP}, 2, v{TMP}')
    a(f'v_add_u32 v{TMP}, {CB}, v{TMP}')
    a(f's_lshl_b32 s{sT0}, s{sW}, 6')
    a(f'v_mul_f32 v{ACC+8}, {hx(f2u(-LOG2E))}, v{ACC+8}')
    a(f'v_add_u32 v{TMP+1}, s{sT0}, v{TMP}')
    a(f'ds_write_b32 v{TMP+1}, v{ACC+8}')
    a(f's_lshl_b32 s{sT0}, s{sC0}, 12')
    a(f's_add_u32 s{sT0}, s{sT0}, {HB}')
    a(f'v_add_u32 v{vHW}, s{sT0}, v{VA}')
    a(f's_lshl_b32 s{sT0}, s{sCS}, 12')
    a(f's_lshl_b32 s{sT1}, s{sT1}, 3')
    a(f's_add_u32 s{sT0}, s{sT0}, s{sT1}')
    a(f's_add_u32 s{sT0}, s{sT0}, {HB}')
    a(f'v_add_u32 v{vHS}, s{sT0}, v{VA}')
    a(f's_mul_i32 s{sST}, s{sJ}, {ACT}')
    a(f's_mul_i32 s{sT0}, s{sTB}, {4*18432}')
    a(f's_add_u32 s{sST}, s{sST}, s{sT0}')
    a(f's_add_u32 s{sST}, s{sST}, {hx(PART)}')
    a(f's_lshl_b32 s{sT0}, s{sCS}, 10')
    a(f's_add_u32 s{sSS}, s{sST}, s{sT0}')
    a(f's_add_u32 s{sSS}, s{sSS}, s{sT1}')
    a(f's_lshl_b32 s{sT0}, s{sC0}, 10')
    a(f's_add_u32 s{sST}, s{sST}, s{sT0}')
    VS = 220
    VS = 40
    for tt in range(4): a(f'v_add_u32 v{VS+tt}, {tt*18432}, v{VA}')
    vRB, vRB2 = 46, 47
    a('s_waitcnt lgkmcnt(0)')
    a('s_barrier')
    stamp(a)
    for tt in range(4): a(f'ds_read_b32 v{C1+tt}, v{TMP} offset:{64*tt}')

    def silu_ops(acc, half, single=False):
        ops = []
        def stage(i):
            tt, r = divmod(i, 4)
            x = acc + i; t = TMP + (i % 4)
            return [f'v_mul_f32 v{x}, v{x}, v{C1+tt}', f'v_exp_f32 v{t}, v{x}', f'v_add_f32 v{t}, 1.0, v{t}',
                    f'v_rcp_f32 v{t}, v{t}', f'v_mul_f32 v{x}, v{x}, v{t}']
        for i in range(0, 16, 2):
            A, B = stage(i), stage(i + 1)
            for p, q in zip(A, B): ops += [p, q]
            tt = i // 4
            ops.append(f'v_cvt_pk_bf16_f32 v{PK+4*tt+2*half+(i%4)//2}, v{acc+i}, v{acc+i+1}')
            if i % 4 == 2:
                if single: ops.append(f'ds_write_b64 v{vHS}, {vr(PK+4*tt,2)} offset:{tt*1024}')
                elif half == 1: ops.append(f'ds_write_b128 v{vHW}, {vr(PK+4*tt,4)} offset:{tt*1024}')
        return ops
    FL1 = [o[4:].replace('+', ' ') for o in OPT if o.startswith('fl1=')]; FL1 = FL1[0] if FL1 else 'sc1'
    FL2 = [o[4:].replace('+', ' ') for o in OPT if o.startswith('fl2=')]; FL2 = FL2[0] if FL2 else 'sc1'
    def out_ops(acc, half, single=False):
        ops = []
        for tt in range(4):
            for k in range(2):
                ops.append(f'v_cvt_pk_bf16_f32 v{PK+4*tt+2*half+k}, v{acc+4*tt+2*k}, v{acc+4*tt+2*k+1}')
            if single: ops.append(f'buffer_store_dwordx2 {vr(PK+4*tt,2)}, v{VS+tt}, {sr(SWS,4)}, s{sSS} offen {FL2}')
            elif half == 1: ops.append(f'buffer_store_dwordx4 {vr(PK+4*tt,4)}, v{VS+tt}, {sr(SWS,4)}, s{sST} offen {FL1}')
        return ops

    def tile(slot0, acc, so, fill, breads=None, extra_vm=0, fill_start=3):
        if 'k4nofill' in OPT: fill = []
        nf = len(fill); fi = 0
        gaps = 72 - fill_start
        stores_seen = 0
        for s in range(18):
            for tt in range(4):
                g = 4 * s + tt
                if tt == 0 and 'k4nowait' not in OPT:
                    a(f's_waitcnt vmcnt({extra_vm(s, stores_seen)})')
                if breads is not None:
                    a(f's_waitcnt lgkmcnt({min(11, 71 - g)})')
                a(f'{MF16} {vr(acc+4*tt,4)}, {Rreg(slot0+s)}, {Breg(g)}, {"0" if s == 0 else vr(acc+4*tt,4)}')
                if breads is not None and g + 12 < 72: breads(g + 12)
                if tt == 3 and so is not None and 'k4noload' not in OPT: a(ld(Rreg(slot0+s), s if 'k4same' not in OPT else 0, so if 'k4same' not in OPT else sH))
                if g >= fill_start:
                    want = ((g - fill_start + 1) * nf + gaps - 1) // gaps
                    while fi < want:
                        a(fill[fi])
                        if fill[fi].startswith('buffer_store'): stores_seen += 1
                        fi += 1
        assert fi == nf
    def mk_breads(base):
        a(f'v_add_u32 v{vRB}, {base}, v{VA}')
        a(f'v_add_u32 v{vRB2}, {base+36864}, v{VA}')
        def br(b): a(f'ds_read_b128 {Breg(b)}, v{vRB if b < 36 else vRB2} offset:{(b%36)*1024}')
        for b in range(12): br(b)
        return br
    A0, A1 = ACC, ACC + 16
    br = mk_breads(0)
    tile(0, A0, sP2, [], breads=br, extra_vm=lambda s, st: 35)
    a(f's_add_u32 s{sP1}, s{sP2}, 18432')
    a(f's_add_u32 s{sP2}, s{sP1}, 18432')
    a(f's_mov_b32 s{sIT}, 0')
    stamp(a)
    a.raw('.p2align 6')
    a.label('L_k4_g1')
    tile(18, A1, sP1, silu_ops(A0, 0), extra_vm=lambda s, st: 35)
    tile(0, A0, sP2, silu_ops(A1, 1), extra_vm=lambda s, st: 35)
    a(f'v_add_u32 v{vHW}, 4096, v{vHW}')
    a(f's_add_u32 s{sIT}, s{sIT}, 1')
    a(f's_add_u32 s{sP1}, s{sP1}, 36864')
    a(f's_cmp_eq_u32 s{sIT}, 3')
    a(f's_cselect_b32 s{sP1}, s{sW2}, s{sP1}')
    a(f's_add_u32 s{sP2}, s{sP1}, 18432')
    a(f's_cmp_eq_u32 s{sIT}, 2')
    a(f's_cselect_b32 s{sP2}, s{sSG}, s{sP2}')
    a(f's_cmp_lg_u32 s{sIT}, 4')
    a(f's_cbranch_scc1 L_k4_g1')
    stamp(a)
    for op in silu_ops(A0, 0, single=True): a(op)
    a('s_waitcnt lgkmcnt(0)')
    stamp(a)
    a('s_barrier')
    stamp(a)
    br = mk_breads(HB)
    tile(18, A1, sP1, [], breads=br, extra_vm=lambda s, st: 35)
    a(f's_add_u32 s{sP1}, s{sP1}, 18432')
    a(f's_add_u32 s{sP2}, s{sP1}, 18432')
    a(f's_add_u32 s{sSG}, s{sSG}, {hx(W2F - W1F)}')
    a(f's_mov_b32 s{sIT}, 0')
    stamp(a)
    a.raw('.p2align 6')
    a.label('L_k4_g2')
    tile(0, A0, sP1, out_ops(A1, 0), extra_vm=lambda s, st: 35)
    tile(18, A1, sP2, out_ops(A0, 1), extra_vm=lambda s, st: 35 + st)
    a(f's_add_u32 s{sST}, s{sST}, 1024')
    a(f's_add_u32 s{sIT}, s{sIT}, 1')
    a(f's_add_u32 s{sP1}, s{sP1}, 36864')
    a(f's_cmp_eq_u32 s{sIT}, 3')
    a(f's_cselect_b32 s{sP1}, {hx(OOB)}, s{sP1}')
    a(f's_add_u32 s{sP2}, s{sP1}, 18432')
    a(f's_cmp_eq_u32 s{sIT}, 2')
    a(f's_cselect_b32 s{sP2}, s{sSG}, s{sP2}')
    a(f's_cmp_lg_u32 s{sIT}, 4')
    a(f's_cbranch_scc1 L_k4_g2')
    stamp(a)
    for op in out_ops(A1, 0, single=True): a(op)
    end(a, name, 3, SWS)
    return dict(name=name, grid=256, block=256, lds=147712, vgpr=512, acc=256)

def k5(a):
    name = 'k5_kernel'
    begin(a, name, 256)
    SWS, SO = 4, 8
    a('s_load_dwordx2 s[4:5], s[0:1], 80')
    a('s_load_dwordx2 s[8:9], s[0:1], 64')
    srd(a, SWS, 0x10000000); srd(a, SO, ACT)
    sW, sID, sT0, sT1, sLO, sHI = 30, 31, 32, 33, 34, 35
    a(f'v_lshrrev_b32 v4, 6, v0')
    a(f'v_lshlrev_b32 v2, 4, v0')
    a(f'v_readfirstlane_b32 s{sW}, v4')
    a(f's_mul_i32 s{sT0}, s2, {9*1024}')
    a(f's_add_u32 s{sT1}, s{sT0}, {hx(HOFF)}')
    a(f's_add_u32 s{sT0}, s{sT0}, {hx(PART)}')
    a('s_waitcnt lgkmcnt(0)')
    PR, HR, AC = 16, 48, 52
    for p in range(8):
        a(f'buffer_load_dwordx4 {vr(PR+4*p,4)}, v2, {sr(SWS,4)}, s{sT0} offen')
        if p < 7: a(f's_add_u32 s{sT0}, s{sT0}, {ACT}')
    a(f'buffer_load_dwordx4 {vr(HR,4)}, v2, {sr(SWS,4)}, s{sT1} offen')
    a(f's_lshr_b32 s{sT0}, s2, 1')
    a(f's_mul_i32 s{sT0}, s{sT0}, 18432')
    a(f's_and_b32 s{sT1}, s2, 1')
    a(f's_mul_i32 s{sT1}, s{sT1}, 9')
    a(f's_add_u32 s{sT1}, s{sT1}, s{sW}')
    a(f's_lshl_b32 s{sT1}, s{sT1}, 6')
    a(f's_add_u32 s{sT0}, s{sT0}, s{sT1}')
    a(f'v_and_b32 v4, 15, v0')
    a(f'v_bfe_u32 v5, v0, 4, 2')
    a(f'v_mul_u32_u24 v4, 1152, v4')
    a(f'v_lshl_add_u32 v4, v5, 4, v4')
    a(f's_mov_b32 s{sLO}, 0x00003f80'); a(f's_mov_b32 s{sHI}, 0x3f800000')
    for p in range(8):
        a(f's_waitcnt vmcnt({8-p})')
        for r in range(4):
            for h in range(2):
                a(f'v_dot2_f32_bf16 v{AC+2*r+h}, v{PR+4*p+r}, s{sLO+h}, {"0" if p == 0 else "v%d" % (AC+2*r+h)}')
    a('s_waitcnt vmcnt(0)')
    for r in range(4):
        a(f'v_lshlrev_b32 v{8+2*r}, 16, v{HR+r}')
        a(f'v_and_b32 v{9+2*r}, 0xffff0000, v{HR+r}')
    for i in range(8): a(f'v_fmac_f32 v{8+i}, {hx(f2u(-math.log(2.0)))}, v{AC+i}')
    for r in range(4): a(f'v_cvt_pk_bf16_f32 v{HR+r}, v{8+2*r}, v{9+2*r}')
    a(f'buffer_store_dwordx4 {vr(HR,4)}, v4, {sr(SO,4)}, s{sT0} offen')
    if 'xchk' in OPT:
        a('s_lshl_b32 s51, s2, 2'); a('s_add_u32 s51, s51, 0x7000000')
        a('s_and_b32 s52, s51, 0x700001c')
        a('s_buffer_load_dword s53, s[4:7], s51')
        a('s_buffer_load_dword s54, s[4:7], s52')
        a('s_waitcnt lgkmcnt(0)')
        a('s_cmp_eq_u32 s53, s54')
        a('s_cbranch_scc1 L_end_k5_kernel')
        a('s_mov_b32 s55, 10')
        a.label('L_k5_sl')
        a('s_sleep 127')
        a('s_sub_u32 s55, s55, 1')
        a('s_cmp_lg_u32 s55, 0')
        a('s_cbranch_scc1 L_k5_sl')
    end(a, name, 4, SWS)
    return dict(name=name, grid=256, block=576, lds=0, vgpr=64, acc=64)

def build(kernels):
    a = Asm()
    infos = [k(a) for k in kernels]
    hdr = [f'; @launch kernel={i["name"]} grid=({i["grid"]},1,1) block=({i["block"]},1,1) lds={i["lds"]}' for i in infos]
    hdr += ['.amdgcn_target "amdgcn-amd-amdhsa--gfx950"', '.text'] + [f'.globl {i["name"]}' for i in infos]
    tail = ['.section .rodata,"a"']
    for i in infos:
        tail += ['.p2align 6', f'.amdhsa_kernel {i["name"]}', f'  .amdhsa_next_free_vgpr {i["vgpr"]}', '  .amdhsa_next_free_sgpr 102',
                 f'  .amdhsa_accum_offset {i["acc"]}', '  .amdhsa_group_segment_fixed_size 0', '  .amdhsa_kernarg_size 88',
                 '  .amdhsa_user_sgpr_count 2', '  .amdhsa_user_sgpr_kernarg_segment_ptr 1', '  .amdhsa_system_sgpr_workgroup_id_x 1',
                 '.end_amdhsa_kernel']
    print('nops inserted:', a.nops, file=sys.stderr)
    return '\n'.join(hdr) + '\n' + a.text() + '\n'.join(tail) + '\n'

if __name__ == '__main__':
    out = sys.argv[1]
    if len(sys.argv) > 2 and 'stamp' in sys.argv[2:]: STAMP = True
    OPT = set(sys.argv[2:])
    open(out, 'w').write(build([k1, k2, k3, k4, k5]))
```
